```python
import torch

def _softmax(x, axis=-1):
    return torch.softmax(x, dim=axis)
def _gelu(x):
    return torch.nn.functional.gelu(x, approximate="tanh")
def _silu(x):
    return torch.nn.functional.silu(x)
def _sigmoid(x):
    return torch.sigmoid(x)
def _layernorm(x, axis=-1, eps=1e-5):
    m = x.mean(dim=axis, keepdim=True)
    v = x.var(dim=axis, keepdim=True, unbiased=False)
    return (x - m) / torch.sqrt(v + eps)
def _scatter_add(tgt, idx, src, axis=0):
    return tgt.clone().index_add_(axis, idx, src)
def _segment_sum(src, seg, n):
    out = torch.zeros((n,) + src.shape[1:], dtype=src.dtype)
    return out.index_add_(0, seg, src)
def _pad(x, pw):
    flat = tuple(v for pair in reversed(pw) for v in pair)
    return torch.nn.functional.pad(x, flat)

kernel_name = 'parallel_sum__ssm_conv_s4__dense_activation_gelu__prompt'

def setup_inputs():

    _w = (lambda a: (lambda t: t.to(torch.bfloat16) if t.is_floating_point() else t)(torch.as_tensor(a)))
    def _A_setup():
        B, L, D, N = 1, 2048, 448, 256
        A_re = -(lambda _x: torch.exp(torch.as_tensor(_x)))((lambda *s: torch.randn(*s, dtype=torch.bfloat16) * 6.4)(D, N))
        A_im = torch.pi * (lambda *s: torch.randn(*s, dtype=torch.bfloat16) * 0.05)(D, N)
        B_re = (lambda *s: torch.randn(*s, dtype=torch.bfloat16) * 0.1)(D, N)
        B_im = (lambda *s: torch.randn(*s, dtype=torch.bfloat16) * 0.1)(D, N)
        C_re = (lambda *s: torch.randn(*s, dtype=torch.bfloat16) * 0.1)(D, N)
        C_im = (lambda *s: torch.randn(*s, dtype=torch.bfloat16) * 0.1)(D, N)
        log_dt = (lambda *s: torch.randn(*s, dtype=torch.bfloat16) * 0.05)(D) * 0.5 - 4.0
        Dskip = (lambda *s: torch.randn(*s, dtype=torch.bfloat16) * 0.05)(D)
        return {
            "u": _w((lambda *s: torch.randn(*s, dtype=torch.bfloat16) * 0.05)(B, L, D)),
            "A_re": _w(A_re),
            "A_im": _w(A_im),
            "B_re": _w(B_re),
            "B_im": _w(B_im),
            "C_re": _w(C_re),
            "C_im": _w(C_im),
            "log_dt": _w(log_dt),
            "Dskip": _w(Dskip),
        }
    _A_in = _A_setup()

    def _B_setup():
        B, S, D, F = 1, 2048, 448, 1792
        return {
            "x": _w((lambda *s: torch.randn(*s, dtype=torch.bfloat16) * 0.05)(B, S, D)),
            "w1": _w((lambda *s: torch.randn(*s, dtype=torch.bfloat16) * 0.8)(D, F) * (D ** -0.5)),
            "b1": _w((lambda *s: torch.randn(*s, dtype=torch.bfloat16) * 0.2)(F) * 0.01),
            "w2": _w((lambda *s: torch.randn(*s, dtype=torch.bfloat16) * 0.2)(F, D) * (F ** -0.5)),
            "b2": _w((lambda *s: torch.randn(*s, dtype=torch.bfloat16) * 0.2)(D) * 0.01),
        }
    _B_in = _B_setup()

    return {
        "A_u": _A_in["u"],
        "A_A_re": _A_in["A_re"],
        "A_A_im": _A_in["A_im"],
        "A_B_re": _A_in["B_re"],
        "A_B_im": _A_in["B_im"],
        "A_C_re": _A_in["C_re"],
        "A_C_im": _A_in["C_im"],
        "A_log_dt": _A_in["log_dt"],
        "A_Dskip": _A_in["Dskip"],
        "B_x": _B_in["x"],
        "B_w1": _B_in["w1"],
        "B_b1": _B_in["b1"],
        "B_w2": _B_in["w2"],
        "B_b2": _B_in["b2"],
    }

def reference(A_u, A_A_re, A_A_im, A_B_re, A_B_im, A_C_re, A_C_im, A_log_dt, A_Dskip, B_x, B_w1, B_b1, B_w2, B_b2):
    def _A_ref(u, A_re, A_im, B_re, B_im, C_re, C_im, log_dt, Dskip):
        Bsz, L, D = u.shape
        dt = torch.exp(log_dt)[:, None]
        A = A_re + 1j * A_im
        Bc = B_re + 1j * B_im
        Cc = C_re + 1j * C_im
        logdA = dt * A
        dB = dt * Bc
        l = (lambda x, dt: x.to(dt))(torch.arange(L), A_re.dtype)
        P = torch.exp(logdA[:, :, None] * l[None, None, :])
        K = torch.einsum("dn,dnl,dn->dl", Cc, P, dB).real
        L2 = 2 * L
        Kp = _pad(K, ((0, 0), (0, L)))
        up = (lambda x, *d: x.permute(*d))(u, 0, 2, 1)
        up = _pad(up, ((0, 0), (0, 0), (0, L)))
        Kf = (lambda x, axes=(-2,-1): torch.fft.rfft2(x.float(), dim=axes))(Kp[:, None, :], axes=(-2, -1))
        Uf = (lambda x, axes=(-2,-1): torch.fft.rfft2(x.float(), dim=axes))(up[:, :, None, :], axes=(-2, -1))
        Yf = Uf * Kf[None, :, :, :]
        y = (lambda x, s, axes=(-2,-1): torch.fft.irfft2(x, s=s, dim=axes).to(torch.bfloat16))(Yf, (1, L2), axes=(-2, -1))[:, :, 0, :L]
        y = (lambda x, *d: x.permute(*d))(y, 0, 2, 1) + u * Dskip[None, None, :]
        return y

    def _B_ref(x, w1, b1, w2, b2):
        h = torch.einsum("bsd,df->bsf", x, w1) + b1
        h = _gelu(h)
        return torch.einsum("bsf,fd->bsd", h, w2) + b2

    x = A_u
    xn = _layernorm(x, axis=-1)
    return x + _A_ref(xn, A_A_re, A_A_im, A_B_re, A_B_im, A_C_re, A_C_im, A_log_dt, A_Dskip) + _B_ref(xn, B_w1, B_b1, B_w2, B_b2)
```

```python
import re

def v(n, c=1):
    return f"v{n}" if c == 1 else f"v[{n}:{n+c-1}]"
def s(n, c=1):
    return f"s{n}" if c == 1 else f"s[{n}:{n+c-1}]"
def a(n, c=1):
    return f"a{n}" if c == 1 else f"a[{n}:{n+c-1}]"

TRANS = ("v_exp_f32", "v_log_f32", "v_rcp_f32", "v_rsq_f32", "v_sqrt_f32", "v_sin_f32", "v_cos_f32", "v_rcp_iflag_f32")
RMW = ("v_fmac_f32", "v_dot2c_f32_bf16", "v_pk_fmac_f16", "v_dot2c_f32_f16", "v_mac_f32")
REG_RE = re.compile(r"^(-|\|)?(?:abs\(|neg\()?([vsa])(?:(\d+)|\[(\d+):(\d+)\])\)?\|?$")

def parse_reg(tok):
    tok = tok.strip()
    if tok in ("vcc", "exec"):
        return [("s", tok + "_lo"), ("s", tok + "_hi")]
    if tok in ("vcc_lo", "vcc_hi", "exec_lo", "exec_hi", "m0", "scc"):
        return [("s", tok)]
    m = REG_RE.match(tok)
    if not m: return []
    f = m.group(2)
    if m.group(3) is not None:
        lo = hi = int(m.group(3))
    else:
        lo, hi = int(m.group(4)), int(m.group(5))
    f2 = "v" if f in ("v", "a") else "s"
    if f == "a": return [("v", 1000 + i) for i in range(lo, hi + 1)]
    return [(f2, i) for i in range(lo, hi + 1)]

class Ins:
    __slots__ = ("text", "op", "kind", "wr", "rd", "label", "target", "nop", "passes", "cwr", "srcc", "flags")
    def __init__(self, text):
        self.text = text
        self.label = None; self.target = None; self.nop = 0
        self.wr = set(); self.rd = set(); self.kind = None; self.passes = 0; self.srcc = set(); self.flags = ""
        t = text.split(";")[0].strip()
        if not t:
            self.op = None; self.kind = "none"; return
        if t.endswith(":"):
            self.label = t[:-1]; self.op = None; self.kind = "label"; return
        if t.startswith("."):
            self.op = None; self.kind = "none"; return
        parts = t.split(None, 1)
        op = parts[0]; self.op = op
        rest = parts[1] if len(parts) > 1 else ""
        ops = []; depth = 0; cur = ""
        for ch in rest:
            if ch == "[": depth += 1
            if ch == "]": depth -= 1
            if ch == "," and depth == 0:
                ops.append(cur.strip()); cur = ""
            else: cur += ch
        if cur.strip(): ops.append(cur.strip())
        mods = ""
        if ops:
            last = ops[-1].split()
            if len(last) > 1:
                ops[-1] = last[0]; mods = " ".join(last[1:])
        self.flags = mods
        R = lambda k: set(parse_reg(ops[k])) if k < len(ops) else set()
        allr = lambda lo: set().union(*[R(k) for k in range(lo, len(ops))]) if len(ops) > lo else set()
        base = re.sub(r"_(e32|e64|dpp|sdwa)$", "", op)
        if op == "s_nop":
            self.kind = "nop"; self.nop = int(ops[0], 0) + 1
        elif op.startswith("v_mfma"):
            self.kind = "mfma"
            self.wr = R(0); self.rd = R(1) | R(2) | R(3); self.srcc = R(3)
            self.passes = 8 if "32x32x16" in op else 4 if "16x16x32" in op else 16
        elif op.startswith("v_"):
            self.kind = "trans" if base in TRANS else "valu"
            if base.startswith("v_cmp"):
                self.wr = R(0); self.rd = allr(1)
                if base.startswith("v_cmpx"): self.wr |= set(parse_reg("exec"))
            elif base in ("v_readfirstlane_b32", "v_readlane_b32"):
                self.wr = R(0); self.rd = allr(1); self.kind = "readlane"
            elif base.startswith("v_permlane") and "swap" in base:
                self.wr = R(0) | R(1); self.rd = R(0) | R(1); self.kind = "permlane"
            elif base in ("v_add_co_u32", "v_sub_co_u32", "v_addc_co_u32", "v_subb_co_u32", "v_subrev_co_u32"):
                self.wr = R(0) | R(1); self.rd = allr(2)
            elif base == "v_cndmask_b32":
                self.wr = R(0); self.rd = allr(1)
                if len(ops) < 4: self.rd |= set(parse_reg("vcc"))
            else:
                self.wr = R(0); self.rd = allr(1)
                if base in RMW: self.rd |= R(0)
            if "op_sel" in mods and base.startswith("v_cvt"): pass
            if any(k in mods for k in ("quad_perm", "row_shr", "row_shl", "row_ror", "row_mirror", "row_half_mirror", "row_bcast", "wave_shr", "wave_shl", "row_newbcast")):
                self.kind = "dpp"
            if "dst_sel" in mods: self.kind = "sdwa"
        elif op.startswith("ds_"):
            self.kind = "ds"
            if op.startswith("ds_read") or op.startswith("ds_bpermute") or op.startswith("ds_swizzle") or op.startswith("ds_permute"):
                self.wr = R(0); self.rd = allr(1)
            else:
                self.rd = allr(0)
        elif op.startswith("buffer_") or op.startswith("global_"):
            self.kind = "vmem"
            islds = " lds" in (" " + mods) or op.startswith("global_load_lds")
            if op.startswith("buffer_wbl2") or op.startswith("buffer_inv"):
                pass
            elif "load" in op and not islds:
                self.wr = R(0); self.rd = allr(1)
            elif "atomic" in op and "sc0" in mods:
                self.wr = R(0); self.rd = allr(0)
            else:
                self.rd = allr(0)
                if islds: self.rd |= {("s", "m0")}
        elif op.startswith("s_load") or op.startswith("s_buffer_load") or op in ("s_memtime", "s_memrealtime"):
            self.kind = "smem"; self.wr = R(0); self.rd = allr(1)
        elif op.startswith("s_cbranch") or op == "s_branch":
            self.kind = "branch"; self.target = ops[0]
        elif op.startswith("s_"):
            self.kind = "salu"
            if op.startswith("s_cmp") or op in ("s_waitcnt", "s_barrier", "s_endpgm", "s_setprio", "s_sleep", "s_setreg_b32", "s_setreg_imm32_b32", "s_bitcmp0_b32", "s_bitcmp1_b32"):
                self.rd = allr(0)
            else:
                self.wr = R(0); self.rd = allr(1)
                if "saveexec" in op: self.wr |= set(parse_reg("exec"))
        else:
            raise ValueError("unknown instr: " + text)

def need(p, c):
    n = 0
    pk, ck = p.kind, c.kind
    VALUS = ("valu", "trans", "dpp", "sdwa", "permlane", "readlane")
    pv = {r for r in p.wr if r[0] == "v"}; ps = {r for r in p.wr if r[0] == "s"}
    if pk in VALUS:
        if pv & c.rd:
            if ck == "mfma": n = max(n, 2)
            if ck == "dpp": n = max(n, 2)
            if ck == "permlane": n = max(n, 2)
            if ck == "readlane": n = max(n, 1)
            if pk == "trans" and ck in VALUS and ck != "trans": n = max(n, 1)
            if pk == "trans" and ck == "trans": n = max(n, 1)
            if pk == "trans" and ck in ("mfma",): n = max(n, 2)
            if pk == "sdwa" and ck in VALUS: n = max(n, 1)
        if ps & c.rd:
            if ck in VALUS or ck == "mfma": n = max(n, 2)
            if ck == "readlane": n = max(n, 4)
            if ck == "vmem": n = max(n, 5)
            if ck in ("salu", "smem", "branch"): n = max(n, 1)
        if ({("s", "exec_lo"), ("s", "exec_hi")} & ps):
            if ck in VALUS: n = max(n, 4)
            if ck == "mfma": n = max(n, 4)
        if ({("s", "vcc_lo"), ("s", "vcc_hi")} & ps) and c.op in ("s_cbranch_vccz", "s_cbranch_vccnz"): n = max(n, 5)
    if pk == "mfma":
        w = {2: 5, 4: 8, 8: 12, 16: 20}[p.passes]
        if ck == "mfma":
            if p.wr & (c.rd - c.srcc): n = max(n, w)
            ov = p.wr & c.srcc
            if ov and not (p.wr == c.srcc and p.passes == c.passes):
                n = max(n, {2: 4, 4: 6, 8: 10, 16: 18}[p.passes])
            if (p.wr & c.wr) and not (p.wr == c.wr): n = max(n, w)
        elif ck in VALUS or ck in ("vmem", "ds"):
            if p.wr & (c.rd | c.wr): n = max(n, w)
        if ck in VALUS and (p.srcc & c.wr):
            n = max(n, {2: 1, 4: 3, 8: 7, 16: 15}[p.passes])
    if pk == "salu" and ("s", "m0") in p.wr and ("s", "m0") in c.rd and ck in ("vmem", "ds"): n = max(n, 1)
    if pk == "salu" and ({("s", "exec_lo"), ("s", "exec_hi")} & p.wr) and ck == "dpp": n = max(n, 1)
    if pk == "vmem" and p.op and ("store" in p.op) and ("x4" in p.op or "x3" in p.op):
        data = {r for r in p.rd if r[0] == "v"}
        if data & c.wr:
            n = max(n, 2 if ck in VALUS or ck == "mfma" else 1)
    return n

class Asm:
    def __init__(self):
        self.ins = []
    def __call__(self, text):
        for line in text.split("\n"):
            if line.strip(): self.ins.append(Ins(line.strip()))
        return self
    def label(self, name): self(name + ":")
    def pad_hazards(self):
        changed = True; total = 0; it = 0
        while changed:
            changed = False; it += 1
            ins = self.ins
            labels = {x.label: i for i, x in enumerate(ins) if x.label}
            preds = [[] for _ in ins]
            for i, x in enumerate(ins):
                falls = True
                if x.kind == "branch":
                    if x.target in labels: preds[labels[x.target]].append(i)
                    if x.op == "s_branch": falls = False
                if x.op == "s_endpgm": falls = False
                if falls and i + 1 < len(ins): preds[i + 1].append(i)
            out = []; cool = 0
            for i, c in enumerate(ins):
                if c.kind in ("none", "label", "nop", None):
                    out.append(c); continue
                if cool > 0:
                    cool -= 1; out.append(c); continue
                worst = 0
                stack = [(p, 0) for p in preds[i]]
                seen = {}
                while stack:
                    j, d = stack.pop()
                    if d >= 20: continue
                    if seen.get(j, 99) <= d: continue
                    seen[j] = d
                    p = ins[j]
                    if p.kind in ("none", "label"):
                        w = 0
                    elif p.kind == "nop":
                        w = p.nop
                    else:
                        nn = need(p, c)
                        if nn > d: worst = max(worst, nn - d)
                        w = 1
                    for q in preds[j]: stack.append((q, d + w))
                if worst > 0:
                    k = worst
                    while k > 0:
                        m = min(k, 16); out.append(Ins(f"s_nop {m-1}")); k -= m
                    total += worst; changed = True; cool = 24
                out.append(c)
            self.ins = out
            if it > 2000: raise RuntimeError("hazard loop")
        return total
    def text(self):
        o = []
        for x in self.ins:
            if x.kind == "label": o.append(x.text)
            else: o.append("    " + x.text)
        return "\n".join(o) + "\n"

class Regs:
    def __init__(self, start=0, limit=256): self.n = start; self.limit = limit; self.hi = start
    def alloc(self, c=1, align=None):
        al = align or (2 if c >= 2 else 1)
        self.n = (self.n + al - 1) // al * al
        r = self.n; self.n += c
        self.hi = max(self.hi, self.n)
        assert self.n <= self.limit, "out of registers"
        return r
    def mark(self): return self.n
    def release(self, m): self.n = m
```

```python
import sys
from common import *

import os
PREFETCH = os.environ.get('PF', '1') == '1'
PF_N = {'g1': 2, 'm': 3, 's': 3}
def build_kernel(kname, roles, sgpr=96):
    A = Asm()
    tot = sum(c for _, c, _ in roles)
    bases = {}; b = 0
    for nm, cnt, fn in roles:
        bases[nm] = b; b += cnt
    A(f"s_cmp_ge_u32 s2, {tot}")
    A(f"s_cbranch_scc1 L_exit_{kname}")
    for nm, cnt, fn in roles[:-1]:
        A(f"s_cmp_lt_u32 s2, {bases[nm] + cnt}")
        A(f"s_cbranch_scc1 L_{kname}_{nm}")
    hi = 1
    for nm, cnt, fn in [roles[-1]] + roles[:-1]:
        A.label(f"L_{kname}_{nm}")
        if PREFETCH:
            A("s_getpc_b64 s[4:5]")
            A.label(f"L_{kname}_{nm}_pc")
            A("v_lshlrev_b32 v1, 7, v0")
            A("v_cmp_gt_u32 vcc, 64, v0")
            A("s_and_saveexec_b64 s[6:7], vcc")
            A(f"s_cbranch_execz L_{kname}_{nm}_pf")
            npf = PF_N.get(nm, 1)
            for k in range(npf):
                A(f"v_min_u32 v1, L_{kname}_{nm}_end-L_{kname}_{nm}_pc-4, v1")
                A(f"global_load_dword v2, v1, s[4:5]")
                if k + 1 < npf: A("v_add_u32 v1, 0x2000, v1")
            A.label(f"L_{kname}_{nm}_pf")
            A("s_mov_b64 exec, s[6:7]")
        A(f"s_sub_u32 s3, s2, {bases[nm]}")
        hi = max(hi, fn(A, 3))
        A.label(f"L_{kname}_{nm}_end")
    A.label(f"L_exit_{kname}")
    A("s_endpgm")
    n = A.pad_hazards()
    txt = f".globl {kname}\n.p2align 8\n.type {kname},@function\n{kname}:\n" + A.text()
    return txt, hi, tot, n

def build_file(kernels, tables="", header=""):
    s_ = header
    body = ""; desc = ""; launches = ""
    for ki, (kname, roles, lds) in enumerate(kernels):
        DIAG_IDX[0] = ki
        txt, hi, tot, n = build_kernel(kname, roles)
        launches += f"; @launch kernel={kname} grid=({tot},1,1) block=(256,1,1) lds={lds}\n"
        body += txt
        vg = (hi + 7) // 8 * 8
        desc += kernel_desc(kname, vg)
        print(f"{kname}: wgs={tot} vgpr={hi} nops={n} lines={txt.count(chr(10))}", file=sys.stderr)
    out = s_ + launches + '.amdgcn_target "amdgcn-amd-amdhsa--gfx950"\n.text\n' + body + tables + '.section .rodata,"a"\n' + desc
    return out
```

```python
from asmdsl import *
NAME = "parallel_sum__ssm_conv_s4__dense_activation_gelu__prompt"
KA = dict(x=0, Are=8, Aim=16, Bre=24, Bim=32, Cre=40, Cim=48, ldt=56, Dsk=64, bx=72, w1=80, b1=88, w2=96, b2=104, out=112, dbg=120, ws=128)
H_OFF = 0
XT_OFF = 0x700000
KT_OFF = 0x8C0000
Y_OFF = 0xA80000
ST_OFF = 0xC40000
AUGA_OFF = 0xC44000
AUGB_OFF = 0xC52000
WS_USED = 0xC62000
X_BYTES = 2048 * 448 * 2
W_BYTES = 448 * 1792 * 2
P_BYTES = 448 * 256 * 2

def srd(A, sreg, nbytes):
    A(f"s_mov_b32 {s(sreg+2)}, {nbytes}")
    A(f"s_mov_b32 {s(sreg+3)}, 0x20000")

def f32bits(x):
    import struct
    return "0x%08x" % struct.unpack("<I", struct.pack("<f", x))[0]

def kernel_desc(name, vgpr, sgpr=96):
    acc = (vgpr + 3) // 4 * 4
    return f""".p2align 6
.amdhsa_kernel {name}
  .amdhsa_next_free_vgpr {vgpr}
  .amdhsa_next_free_sgpr {sgpr}
  .amdhsa_accum_offset {acc}
  .amdhsa_group_segment_fixed_size 0
  .amdhsa_kernarg_size 136
  .amdhsa_user_sgpr_count 2
  .amdhsa_user_sgpr_kernarg_segment_ptr 1
  .amdhsa_system_sgpr_workgroup_id_x 1
  .amdhsa_float_denorm_mode_32 3
.end_amdhsa_kernel
"""

DIAG = False
DIAG_OFF = 0x1000000
DIAG_IDX = [0]
_SB = 60
def stamp(A, i):
    if DIAG: A(f"s_memrealtime {s(_SB + 2*i, 2)}")
def cstamp(A, i):
    if DIAG: A(f"s_memtime {s(_SB + 2*i, 2)}")
def dump_stamps(A, n, slot_sreg, sWS, vt0, vt1):
    if not DIAG: return
    A("s_waitcnt lgkmcnt(0)")
    A(f"s_lshl_b32 s58, {s(slot_sreg)}, 6")
    A(f"s_add_u32 s58, s58, {DIAG_OFF + DIAG_IDX[0] * 0x10000}")
    A(f"s_mov_b32 {s(sWS+2)}, 0x2000000")
    for i in range(n):
        A(f"v_mov_b32 {v(vt0)}, {s(_SB + 2*i)}")
        A(f"v_mov_b32 {v(vt1)}, {4*i}")
        A(f"buffer_store_dword {v(vt0)}, {v(vt1)}, {s(sWS,4)}, s58 offen")
```

```python
from common import *

def emit_cs(A, sid, publish=None, lds0=0, end=True):
    sW, sWS, sB1 = 8, 12, 16
    s_wv, s_t0, s_t1 = 20, 21, 22
    stamp(A, 0)
    A(f"s_load_dwordx2 {s(sW,2)}, s[0:1], {KA['w1']}")
    A(f"s_load_dwordx2 {s(sWS,2)}, s[0:1], {KA['ws']}")
    A(f"s_load_dwordx2 {s(sB1,2)}, s[0:1], {KA['b1']}")
    R = Regs(3)
    lane = R.alloc(); t0, t1, t2, t3 = [R.alloc() for _ in range(4)]
    raw = R.alloc(28, 4); X = R.alloc(8, 2); acc = R.alloc(8, 4); vb = R.alloc()
    A(f"v_lshrrev_b32 {v(t0)}, 6, v0")
    A(f"v_and_b32 {v(lane)}, 63, v0")
    A(f"v_readfirstlane_b32 {s(s_wv)}, {v(t0)}")
    A(f"v_lshrrev_b32 {v(t1)}, 2, v0")
    A(f"v_mul_u32_u24 {v(t1)}, 3584, {v(t1)}")
    A(f"v_and_b32 {v(t2)}, 3, v0")
    A(f"v_lshl_add_u32 {v(t1)}, {v(t2)}, 4, {v(t1)}")
    A(f"s_lshl_b32 {s(s_t0)}, {s(sid)}, 6")
    A("s_waitcnt lgkmcnt(0)")
    srd(A, sW, W_BYTES); srd(A, sWS, WS_USED); srd(A, sB1, 3584)
    for i in range(7):
        A(f"s_add_u32 {s(s_t1)}, {s(s_t0)}, {i*64*3584}")
        A(f"buffer_load_dwordx4 {v(raw+4*i,4)}, {v(t1)}, {s(sW,4)}, {s(s_t1)} offen")
    A(f"v_and_b32 {v(t3)}, 31, {v(lane)}")
    A(f"v_lshlrev_b32 {v(t3)}, 1, {v(t3)}")
    A(f"buffer_load_ushort {v(vb)}, {v(t3)}, {s(sB1,4)}, {s(s_t0)} offen")
    for i in range(7):
        A(f"s_waitcnt vmcnt({7-i})")
        dst = acc if i == 0 else X
        for w in range(4):
            A(f"v_lshlrev_b32 {v(dst+2*w)}, 16, {v(raw+4*i+w)}")
            A(f"v_and_b32 {v(dst+2*w+1)}, 0xffff0000, {v(raw+4*i+w)}")
        if i:
            for p in range(4): A(f"v_pk_add_f32 {v(acc+2*p,2)}, {v(acc+2*p,2)}, {v(X+2*p,2)}")
    A(f"v_lshrrev_b32 {v(t1)}, 2, v0")
    A(f"v_and_b32 {v(t2)}, 3, v0")
    A(f"v_mul_u32_u24 {v(t2)}, {8*65}, {v(t2)}")
    A(f"v_add_u32 {v(t1)}, {v(t1)}, {v(t2)}")
    A(f"v_lshlrev_b32 {v(t1)}, 2, {v(t1)}")
    if lds0: A(f"v_add_u32 {v(t1)}, {lds0}, {v(t1)}")
    for j in range(8):
        A(f"ds_write_b32 {v(t1)}, {v(acc+j)} offset:{j*65*4}")
    A("s_waitcnt lgkmcnt(0)")
    A("s_barrier")
    A(f"v_and_b32 {v(t1)}, 31, v0")
    A(f"v_lshrrev_b32 {v(t2)}, 5, v0")
    A(f"v_mul_u32_u24 {v(t1)}, 65, {v(t1)}")
    A(f"v_lshl_add_u32 {v(t1)}, {v(t2)}, 3, {v(t1)}")
    A(f"v_lshlrev_b32 {v(t1)}, 2, {v(t1)}")
    if lds0: A(f"v_add_u32 {v(t1)}, {lds0}, {v(t1)}")
    for j in range(8):
        A(f"ds_read_b32 {v(X+j)}, {v(t1)} offset:{4*j}")
    A("s_waitcnt lgkmcnt(0)")
    for p in range(2): A(f"v_pk_add_f32 {v(X+2*p,2)}, {v(X+2*p,2)}, {v(X+4+2*p,2)}")
    A(f"v_pk_add_f32 {v(X,2)}, {v(X,2)}, {v(X+2,2)}")
    A(f"v_add_f32 {v(X)}, {v(X)}, {v(X+1)}")
    A(f"v_lshlrev_b32 {v(t1)}, 2, v0")
    A(f"v_add_u32 {v(t1)}, {lds0 + 8448}, {v(t1)}")
    A(f"ds_write_b32 {v(t1)}, {v(X)}")
    A("s_waitcnt lgkmcnt(0)")
    A("s_barrier")
    A(f"s_cmp_lg_u32 {s(s_wv)}, 0")
    A(f"s_cbranch_scc1 L_cs_done_{id(A)}")
    A(f"v_and_b32 {v(t1)}, 31, {v(lane)}")
    A(f"v_lshlrev_b32 {v(t1)}, 2, {v(t1)}")
    A(f"v_add_u32 {v(t1)}, {lds0 + 8448}, {v(t1)}")
    for j in range(8):
        A(f"ds_read_b32 {v(X+j)}, {v(t1)} offset:{128*j}")
    A("s_waitcnt lgkmcnt(0) vmcnt(0)")
    for p in range(2): A(f"v_pk_add_f32 {v(X+2*p,2)}, {v(X+2*p,2)}, {v(X+4+2*p,2)}")
    A(f"v_pk_add_f32 {v(X,2)}, {v(X,2)}, {v(X+2,2)}")
    A(f"v_add_f32 {v(X)}, {v(X)}, {v(X+1)}")
    A(f"v_cvt_pk_bf16_f32 {v(t1)}, {v(X)}, {v(X)}")
    A(f"v_and_b32 {v(t2)}, 0xffff0000, {v(t1)}")
    A(f"v_sub_f32 {v(t2)}, {v(X)}, {v(t2)}")
    A(f"v_cvt_pk_bf16_f32 {v(acc)}, {v(X)}, {v(t2)}")
    A(f"v_mov_b32 {v(acc+1)}, {v(vb)}")
    A(f"v_mov_b32 {v(acc+2)}, 0"); A(f"v_mov_b32 {v(acc+3)}, 0")
    A(f"v_cmp_gt_u32 vcc, 32, {v(lane)}")
    A(f"v_cndmask_b32 {v(acc)}, 0, {v(acc)}, vcc")
    A(f"v_cndmask_b32 {v(acc+1)}, 0, {v(acc+1)}, vcc")
    A(f"v_lshlrev_b32 {v(t1)}, 4, {v(lane)}")
    A(f"s_lshl_b32 {s(s_t0)}, {s(sid)}, 10")
    A(f"s_add_u32 {s(s_t0)}, {s(s_t0)}, {AUGA_OFF}")
    A(f"buffer_store_dwordx4 {v(acc,4)}, {v(t1)}, {s(sWS,4)}, {s(s_t0)} offen sc1")
    if publish: publish(A, "cs")
    A.label(f"L_cs_done_{id(A)}")
    stamp(A, 4)
    dump_stamps(A, 6, 2, sWS, t0, t1)
    if end: A("s_endpgm")
    return R.hi
```

```python
from common import *
import math, os
OPT = os.environ.get('G1OPT', '')

class VmQ:
    def __init__(self, A): self.A = A; self.q = []
    def issue(self, tag, n=1): self.q += [tag] * n
    def wait(self, tag):
        idx = [i for i, t in enumerate(self.q) if t == tag]
        if not idx: return
        last = idx[-1]
        n = len(self.q) - 1 - last
        self.A(f"s_waitcnt vmcnt({min(n, 63)})")
        if n <= 63: self.q = self.q[last + 1:]
    def wait_all(self):
        self.A("s_waitcnt vmcnt(0)"); self.q = []

def emit_g1(A, sid, stats_hook=lambda A: None, end_hook=None, R=None):
    sX, sW, sWS, sB1 = 8, 12, 16, 20
    s_rb, s_fb, s_wv, s_wf, s_wt = 24, 25, 26, 27, 28
    s_xb, s_wb, s_t0, s_t1, s_t2, s_ho, s_lx, s_lw = 29, 30, 32, 33, 34, 36, 31, 35
    Q = VmQ(A)
    stamp(A, 0)
    A(f"s_load_dwordx2 {s(sX,2)}, s[0:1], {KA['x']}")
    A(f"s_load_dwordx2 {s(sW,2)}, s[0:1], {KA['w1']}")
    A(f"s_load_dwordx2 {s(sWS,2)}, s[0:1], {KA['ws']}")
    R = R or Regs(3)
    lane = R.alloc(); tmp = [R.alloc() for _ in range(6)]
    vXe, vXo, vW = R.alloc(), R.alloc(), R.alloc()
    vA = [R.alloc(), R.alloc()]
    vB = [[R.alloc() for _ in range(4)] for _ in range(2)]
    augA = [R.alloc(4, 4), R.alloc(4, 4)]; augB = [R.alloc(4, 4), R.alloc(4, 4)]
    P = [R.alloc(2, 2), R.alloc(2, 2)]
    vH = R.alloc()
    acc = [[R.alloc(16, 4) for _ in range(2)] for _ in range(2)]
    fA = [[R.alloc(4, 4) for _ in range(2)] for _ in range(2)]
    fB = [[R.alloc(4, 4) for _ in range(2)] for _ in range(2)]
    ep = R.alloc(32, 4)
    t0, t1, t2, t3, t4, t5 = tmp
    A(f"v_lshrrev_b32 {v(t0)}, 6, v0")
    A(f"v_and_b32 {v(lane)}, 63, v0")
    A(f"v_readfirstlane_b32 {s(s_wv)}, {v(t0)}")
    A(f"s_and_b32 {s(s_t0)}, {s(sid)}, 7")
    A(f"s_lshr_b32 {s(s_t1)}, {s(sid)}, 3")
    A(f"s_and_b32 {s(s_rb)}, {s(s_t0)}, 3")
    A(f"s_lshl_b32 {s(s_rb)}, {s(s_rb)}, 2")
    A(f"s_and_b32 {s(s_t2)}, {s(s_t1)}, 3")
    A(f"s_add_u32 {s(s_rb)}, {s(s_rb)}, {s(s_t2)}")
    A(f"s_lshr_b32 {s(s_t0)}, {s(s_t0)}, 2")
    A(f"s_mul_i32 {s(s_fb)}, {s(s_t0)}, 7")
    A(f"s_lshr_b32 {s(s_t1)}, {s(s_t1)}, 2")
    A(f"s_add_u32 {s(s_fb)}, {s(s_fb)}, {s(s_t1)}")
    A(f"s_lshr_b32 {s(s_wf)}, {s(s_wv)}, 1")
    A(f"s_and_b32 {s(s_wt)}, {s(s_wv)}, 1")
    A(f"s_mul_i32 {s(s_xb)}, {s(s_rb)}, {128*896}")
    A(f"s_mul_i32 {s(s_t0)}, {s(s_wv)}, {4*7168}")
    A(f"s_add_u32 {s(s_xb)}, {s(s_xb)}, {s(s_t0)}")
    A(f"s_lshl_b32 {s(s_wb)}, {s(s_fb)}, 8")
    A(f"s_mul_i32 {s(s_t0)}, {s(s_wv)}, {2*14336}")
    A(f"s_add_u32 {s(s_wb)}, {s(s_wb)}, {s(s_t0)}")
    A(f"s_lshl_b32 {s(s_lx)}, {s(s_wv)}, 12")
    A(f"s_lshl_b32 {s(s_lw)}, {s(s_wv)}, 11")
    A(f"v_lshrrev_b32 {v(t0)}, 3, {v(lane)}")
    A(f"v_mul_u32_u24 {v(t0)}, 896, {v(t0)}")
    A(f"v_and_b32 {v(t1)}, 7, {v(lane)}")
    A(f"v_lshrrev_b32 {v(t2)}, 4, {v(lane)}")
    A(f"v_xor_b32 {v(t1)}, {v(t1)}, {v(t2)}")
    A(f"v_lshl_add_u32 {v(vXe)}, {v(t1)}, 4, {v(t0)}")
    A(f"v_xor_b32 {v(t1)}, 4, {v(t1)}")
    A(f"v_lshl_add_u32 {v(vXo)}, {v(t1)}, 4, {v(t0)}")
    A(f"v_mul_u32_u24 {v(t0)}, 3584, {v(t2)}")
    A(f"v_and_b32 {v(t1)}, 15, {v(lane)}")
    A(f"v_lshlrev_b32 {v(t3)}, 2, {v(t2)}")
    A(f"v_xor_b32 {v(t1)}, {v(t1)}, {v(t3)}")
    A(f"v_lshl_add_u32 {v(vW)}, {v(t1)}, 4, {v(t0)}")
    A("s_waitcnt lgkmcnt(0)")
    srd(A, sX, X_BYTES); srd(A, sW, W_BYTES); srd(A, sWS, WS_USED)
    XS = lambda c: (c % 3) * 16384
    WSL = lambda j: 49152 + (j % 4) * 8192
    def dmaX(c):
        L = []
        for ii in range(4):
            def f(ii=ii):
                A(f"s_add_u32 m0, {s(s_lx)}, {XS(c) + ii*1024}")
                A(f"s_add_u32 {s(s_t0)}, {s(s_xb)}, {ii*7168 + c*128}")
                A(f"buffer_load_dwordx4 {v(vXe if ii % 2 == 0 else vXo)}, {s(sX,4)}, {s(s_t0)} offen lds")
                Q.issue(("X", c))
            L.append(f)
        return L
    def dmaW(j):
        L = []
        for ii in range(2):
            def f(ii=ii):
                A(f"s_add_u32 m0, {s(s_lw)}, {WSL(j) + ii*1024}")
                A(f"s_add_u32 {s(s_t0)}, {s(s_wb)}, {ii*14336 + j*114688}")
                A(f"buffer_load_dwordx4 {v(vW)}, {s(sW,4)}, {s(s_t0)} offen lds")
                Q.issue(("W", j))
            L.append(f)
        return L
    for f in dmaX(0) + dmaW(0) + dmaW(1) + dmaX(1) + dmaW(2) + dmaW(3) + dmaX(2): f()
    A(f"v_lshrrev_b32 {v(t0)}, 5, {v(lane)}")
    A(f"v_bfe_u32 {v(t1)}, {v(lane)}, 2, 2")
    A(f"v_lshl_add_u32 {v(t2)}, {v(t0)}, 3, {v(t1)}")
    A(f"v_lshlrev_b32 {v(t2)}, 8, {v(t2)}")
    A(f"v_bfe_u32 {v(t3)}, {v(lane)}, 4, 1")
    A(f"v_lshlrev_b32 {v(t3)}, 1, {v(t3)}")
    A(f"v_bfe_u32 {v(t4)}, {v(lane)}, 1, 1")
    A(f"v_add_u32 {v(t3)}, {v(t3)}, {v(t4)}")
    A(f"v_lshl_add_u32 {v(t2)}, {v(t3)}, 4, {v(t2)}")
    A(f"v_and_b32 {v(t4)}, 1, {v(lane)}")
    A(f"v_lshl_add_u32 {v(t2)}, {v(t4)}, 3, {v(t2)}")
    for u in range(2):
        A(f"s_xor_b32 {s(s_t0)}, {s(s_wt)}, {u}")
        A(f"s_lshl_b32 {s(s_t1)}, {s(s_wf)}, 1")
        A(f"s_add_u32 {s(s_t0)}, {s(s_t0)}, {s(s_t1)}")
        A(f"v_xor_b32 {v(t3)}, {s(s_t0)}, {v(t1)}")
        A(f"v_lshl_add_u32 {v(vA[u])}, {v(t3)}, 6, {v(t2)}")
        A(f"v_add_u32 {v(vA[u])}, 49152, {v(vA[u])}")
    A(f"v_and_b32 {v(t1)}, 31, {v(lane)}")
    A(f"v_bfe_u32 {v(t2)}, {v(lane)}, 1, 3")
    A(f"v_xor_b32 {v(t2)}, {v(t2)}, {v(t0)}")
    for u in range(2):
        A(f"s_xor_b32 {s(s_t0)}, {s(s_wf)}, {u}")
        A(f"s_lshl_b32 {s(s_t1)}, {s(s_wt)}, 1")
        A(f"s_add_u32 {s(s_t0)}, {s(s_t0)}, {s(s_t1)}")
        A(f"s_lshl_b32 {s(s_t0)}, {s(s_t0)}, 12")
        A(f"v_lshl_add_u32 {v(t3)}, {v(t1)}, 7, {s(s_t0)}")
        for ks in range(4):
            A(f"v_xor_b32 {v(t4)}, {2*ks}, {v(t2)}")
            A(f"v_lshl_add_u32 {v(vB[u][ks])}, {v(t4)}, 4, {v(t3)}")
    A(f"v_lshlrev_b32 {v(vH)}, 4, {v(lane)}")
    biasA = [0]
    def read_list(step, buf):
        c, ks = divmod(step, 4); j = step >> 1
        wa = WSL(j) + (ks & 1) * 4096
        want = 49152 if wa >= 49152 else 0
        L = []
        if 'noreads' in OPT: return L
        for u in range(2):
            for h in range(2):
                if 'notr' in OPT: continue
                L.append(f"ds_read_b64_tr_b16 {v(fA[buf][u] + 2*h, 2)}, {v(vA[u])} offset:{wa - 49152 + h*1024}")
            if 'nob128' not in OPT: L.append(f"ds_read_b128 {v(fB[buf][u], 4)}, {v(vB[u][ks])} offset:{XS(c)}")
        return L
    order = [(0, 0), (0, 1), (1, 0), (1, 1)]
    def mfma(buf, k, first):
        uf, ut = order[k]
        if 'nomfma' in OPT and not first: return
        cin = "0" if first else v(acc[uf][ut], 16)
        A(f"v_mfma_f32_32x32x16_bf16 {v(acc[uf][ut],16)}, {v(fA[buf][uf],4)}, {v(fB[buf][ut],4)}, {cin}")
    Q.wait(("W", 0))
    A("s_barrier")
    stamp(A, 1); cstamp(A, 6)
    for x in read_list(0, 0): A(x)
    pend = []; GAP = int(os.environ.get('G1GAP', '2'))
    for step in range(28):
        buf = step & 1; first = step == 0; j = step >> 1
        A("s_waitcnt lgkmcnt(0)")
        ex = []
        mfma(buf, 0, first)
        if step == 27:
            rl = []
        elif step & 1 == 0:
            rl = read_list(step + 1, buf ^ 1)
        else:
            jn = j + 1
            Q.wait(("W", jn))
            if jn & 1 == 0: Q.wait(("X", jn >> 1))
            if 'nobar' not in OPT: A("s_barrier")
            rl = read_list(step + 1, buf ^ 1)
            if 'nodma' not in OPT:
                if jn + 3 < 14: ex += dmaW(jn + 3)
                if jn & 1 == 0 and (jn >> 1) + 2 < 7: ex += dmaX((jn >> 1) + 2)
        if step == 20:
            def stl():
                stats_hook(A)
                A(f"v_and_b32 {v(t1)}, 31, {v(lane)}")
                A(f"v_lshlrev_b32 {v(t1)}, 3, {v(t1)}")
                for u in range(2):
                    A(f"s_xor_b32 {s(s_t0)}, {s(s_wf)}, {u}")
                    A(f"s_lshl_b32 {s(s_t1)}, {s(s_wt)}, 1")
                    A(f"s_add_u32 {s(s_t0)}, {s(s_t0)}, {s(s_t1)}")
                    A(f"s_lshl_b32 {s(s_t1)}, {s(s_rb)}, 2")
                    A(f"s_add_u32 {s(s_t0)}, {s(s_t0)}, {s(s_t1)}")
                    A(f"s_lshl_b32 {s(s_t1)}, {s(s_t0)}, 8")
                    A(f"s_add_u32 {s(s_t1)}, {s(s_t1)}, {ST_OFF}")
                    A(f"buffer_load_dwordx2 {v(P[u],2)}, {v(t1)}, {s(sWS,4)}, {s(s_t1)} offen sc1")
                    A(f"s_lshl_b32 {s(s_t1)}, {s(s_t0)}, 10")
                    A(f"s_add_u32 {s(s_t1)}, {s(s_t1)}, {AUGB_OFF}")
                    A(f"buffer_load_dwordx4 {v(augB[u],4)}, {v(vH)}, {s(sWS,4)}, {s(s_t1)} offen sc1")
                    A(f"s_xor_b32 {s(s_t0)}, {s(s_wt)}, {u}")
                    A(f"s_lshl_b32 {s(s_t1)}, {s(s_wf)}, 1")
                    A(f"s_add_u32 {s(s_t0)}, {s(s_t0)}, {s(s_t1)}")
                    A(f"s_lshl_b32 {s(s_t1)}, {s(s_fb)}, 2")
                    A(f"s_add_u32 {s(s_t0)}, {s(s_t0)}, {s(s_t1)}")
                    A(f"s_lshl_b32 {s(s_t0)}, {s(s_t0)}, 10")
                    A(f"s_add_u32 {s(s_t0)}, {s(s_t0)}, {AUGA_OFF}")
                    A(f"buffer_load_dwordx4 {v(augA[u],4)}, {v(vH)}, {s(sWS,4)}, {s(s_t0)} offen sc1")
                    Q.issue("st", 3)
            ex = [stl]
        pend += ex
        def gap(n=1):
            for _ in range(n):
                if pend: pend.pop(0)()
        for x in rl[:3]: A(x)
        mfma(buf, 1, first)
        for x in rl[3:]: A(x)
        mfma(buf, 2, first)
        gap(GAP)
        mfma(buf, 3, first)
        gap(GAP)
        if step & 1 == 0: gap(99)
    stamp(A, 2); cstamp(A, 7)
    Q.wait_all()
    for k, (uf, ut) in enumerate(order):
        A(f"v_mfma_f32_32x32x16_bf16 {v(acc[uf][ut],16)}, {v(augA[uf],4)}, {v(augB[ut],4)}, {v(acc[uf][ut],16)}")
    stamp(A, 3)
    T = ep; Hh = ep + 8; O = [ep + 16, ep + 20]; KK = ep + 24
    k0 = -2.0 * math.sqrt(2.0 / math.pi) * math.log2(math.e)
    A(f"v_mov_b32 {v(KK)}, {f32bits(k0)}")
    A(f"v_mov_b32 {v(KK+1)}, {f32bits(k0 * 0.044715)}")
    ob = 0
    for uf in range(2):
        A(f"s_xor_b32 {s(s_t0)}, {s(s_wt)}, {uf}")
        A(f"s_lshl_b32 {s(s_t1)}, {s(s_wf)}, 1")
        A(f"s_add_u32 {s(s_t2)}, {s(s_t0)}, {s(s_t1)}")
        for ut in range(2):
            A(f"s_xor_b32 {s(s_t0)}, {s(s_wf)}, {ut}")
            A(f"s_lshl_b32 {s(s_t1)}, {s(s_wt)}, 1")
            A(f"s_add_u32 {s(s_t0)}, {s(s_t0)}, {s(s_t1)}")
            A(f"s_lshl_b32 {s(s_t1)}, {s(s_rb)}, 2")
            A(f"s_add_u32 {s(s_t0)}, {s(s_t0)}, {s(s_t1)}")
            A(f"s_mul_i32 {s(s_t0)}, {s(s_t0)}, 112")
            A(f"s_lshl_b32 {s(s_t1)}, {s(s_fb)}, 3")
            A(f"s_add_u32 {s(s_t0)}, {s(s_t0)}, {s(s_t1)}")
            A(f"s_lshl_b32 {s(s_t1)}, {s(s_t2)}, 1")
            A(f"s_add_u32 {s(s_t0)}, {s(s_t0)}, {s(s_t1)}")
            A(f"s_lshl_b32 {s(s_ho)}, {s(s_t0)}, 10")
            for kk in range(2):
                ac = acc[uf][ut] + 8*kk
                pr = range(4)
                for p in pr: A(f"v_pk_mul_f32 {v(Hh+2*p,2)}, {v(ac+2*p,2)}, {v(P[ut],2)} op_sel:[0,1] op_sel_hi:[1,1]")
                for p in pr: A(f"v_pk_mul_f32 {v(T+2*p,2)}, {v(Hh+2*p,2)}, {v(Hh+2*p,2)}")
                for p in pr: A(f"v_pk_fma_f32 {v(T+2*p,2)}, {v(T+2*p,2)}, {v(KK,2)}, {v(KK,2)} op_sel:[0,1,0] op_sel_hi:[1,1,0]")
                for p in pr: A(f"v_pk_mul_f32 {v(T+2*p,2)}, {v(Hh+2*p,2)}, {v(T+2*p,2)}")
                for e in range(8): A(f"v_exp_f32 {v(T+e)}, {v(T+e)}")
                for p in pr: A(f"v_pk_add_f32 {v(T+2*p,2)}, {v(T+2*p,2)}, 1.0 op_sel_hi:[1,0]")
                for e in range(8): A(f"v_rcp_f32 {v(T+e)}, {v(T+e)}")
                for p in pr: A(f"v_pk_mul_f32 {v(T+2*p,2)}, {v(Hh+2*p,2)}, {v(T+2*p,2)}")
                for p in pr: A(f"v_cvt_pk_bf16_f32 {v(O[ob]+p)}, {v(T+2*p)}, {v(T+2*p+1)}")
                A(f"buffer_store_dwordx4 {v(O[ob],4)}, {v(vH)}, {s(sWS,4)}, {s(s_ho)} offen offset:{1024*kk} sc1")
                ob ^= 1
    stamp(A, 4)
    if DIAG:
        A("s_waitcnt vmcnt(0)")
        stamp(A, 5)
    dump_stamps(A, 8, 2, sWS, t0, t1)
    if end_hook: end_hook(A)
    else: A("s_endpgm")
    return R.hi
```

```python
from common import *
from g1 import VmQ
import os
OPT = os.environ.get('G2OPT', '')
PW = 17408

def emit_g2(A, sid, R=None, h_hook=lambda A: None, y_hook=lambda A: None, loaded=False, NSW=8, DH=7):
    sH, sW2, sX, sO, sD, sB = 8, 12, 16, 20, 24, 28
    s_rb, s_cb, s_wv, s_t0, s_t1, s_hb, s_wb, s_lb = 40, 41, 42, 43, 44, 45, 46, 47
    Q = VmQ(A)
    stamp(A, 0)
    A(f"s_load_dwordx2 {s(sH,2)}, s[0:1], {KA['ws']}")
    A(f"s_load_dwordx2 {s(sW2,2)}, s[0:1], {KA['w2']}")
    A(f"s_load_dwordx2 {s(sX,2)}, s[0:1], {KA['x']}")
    A(f"s_load_dwordx2 {s(sO,2)}, s[0:1], {KA['out']}")
    A(f"s_load_dwordx2 {s(sD,2)}, s[0:1], {KA['Dsk']}")
    A(f"s_load_dwordx2 {s(sB,2)}, s[0:1], {KA['b2']}")
    R = R or Regs(3)
    lane = R.alloc(); t0, t1, t2, t3, t4 = [R.alloc() for _ in range(5)]
    vWg, vH = R.alloc(), R.alloc()
    vA = [R.alloc(), R.alloc()]
    acc = [[R.alloc(16, 4) for _ in range(2)] for _ in range(2)]
    fA = [[R.alloc(4, 4) for _ in range(2)] for _ in range(2)]
    hb = [[R.alloc(4, 4) for _ in range(2)] for _ in range(DH)]
    xr = R.alloc(8, 4); st = R.alloc(4, 2); dk = R.alloc(4, 4); bb = R.alloc(4, 4); yr = R.alloc(8, 4)
    vT, vY = R.alloc(), R.alloc()
    A(f"v_lshrrev_b32 {v(t0)}, 6, v0")
    A(f"v_and_b32 {v(lane)}, 63, v0")
    A(f"v_readfirstlane_b32 {s(s_wv)}, {v(t0)}")
    A(f"s_and_b32 {s(s_t0)}, {s(sid)}, 7")
    A(f"s_lshr_b32 {s(s_t1)}, {s(sid)}, 3")
    A(f"s_mul_i32 {s(s_rb)}, {s(s_t1)}, 37")
    A(f"s_lshr_b32 {s(s_rb)}, {s(s_rb)}, 8")
    A(f"s_mul_i32 {s(s_cb)}, {s(s_rb)}, 7")
    A(f"s_sub_u32 {s(s_cb)}, {s(s_t1)}, {s(s_cb)}")
    A(f"s_lshl_b32 {s(s_t0)}, {s(s_t0)}, 2")
    A(f"s_add_u32 {s(s_rb)}, {s(s_rb)}, {s(s_t0)}")
    A(f"s_mul_i32 {s(s_hb)}, {s(s_rb)}, {2*112*1024}")
    A(f"s_mul_i32 {s(s_t0)}, {s(s_wv)}, {28*1024}")
    A(f"s_add_u32 {s(s_hb)}, {s(s_hb)}, {s(s_t0)}")
    if H_OFF: A(f"s_add_u32 {s(s_hb)}, {s(s_hb)}, {H_OFF}")
    A(f"s_mul_i32 {s(s_wb)}, {s(s_wv)}, {28*16*896}")
    A(f"s_lshl_b32 {s(s_t0)}, {s(s_cb)}, 7")
    A(f"s_add_u32 {s(s_wb)}, {s(s_wb)}, {s(s_t0)}")
    A(f"s_mul_i32 {s(s_lb)}, {s(s_wv)}, {PW}")
    A(f"v_lshrrev_b32 {v(t0)}, 3, {v(lane)}")
    A(f"v_mul_u32_u24 {v(t0)}, 896, {v(t0)}")
    A(f"v_bfe_u32 {v(t1)}, {v(lane)}, 4, 1")
    A(f"v_lshlrev_b32 {v(t1)}, 2, {v(t1)}")
    A(f"v_and_b32 {v(t2)}, 7, {v(lane)}")
    A(f"v_xor_b32 {v(t1)}, {v(t1)}, {v(t2)}")
    A(f"v_lshl_add_u32 {v(vWg)}, {v(t1)}, 4, {v(t0)}")
    A(f"v_lshlrev_b32 {v(vH)}, 4, {v(lane)}")
    A(f"v_lshrrev_b32 {v(t0)}, 5, {v(lane)}")
    A(f"v_bfe_u32 {v(t1)}, {v(lane)}, 2, 2")
    A(f"v_lshl_add_u32 {v(t2)}, {v(t0)}, 2, {v(t1)}")
    A(f"v_lshlrev_b32 {v(t2)}, 7, {v(t2)}")
    A(f"v_bfe_u32 {v(t3)}, {v(lane)}, 4, 1")
    A(f"v_lshlrev_b32 {v(t3)}, 1, {v(t3)}")
    A(f"v_bfe_u32 {v(t4)}, {v(lane)}, 1, 1")
    A(f"v_add_u32 {v(t3)}, {v(t3)}, {v(t4)}")
    A(f"v_lshl_add_u32 {v(t2)}, {v(t3)}, 4, {v(t2)}")
    A(f"v_and_b32 {v(t4)}, 1, {v(lane)}")
    A(f"v_lshl_add_u32 {v(t2)}, {v(t4)}, 3, {v(t2)}")
    A(f"v_add_u32 {v(t2)}, {s(s_lb)}, {v(t2)}")
    A(f"v_lshrrev_b32 {v(t1)}, 1, {v(t1)}")
    A(f"v_lshl_add_u32 {v(vA[0])}, {v(t1)}, 6, {v(t2)}")
    A(f"v_xor_b32 {v(t1)}, 1, {v(t1)}")
    A(f"v_lshl_add_u32 {v(vA[1])}, {v(t1)}, 6, {v(t2)}")
    A("s_waitcnt lgkmcnt(0)")
    srd(A, sH, WS_USED); srd(A, sW2, W_BYTES); srd(A, sX, X_BYTES); srd(A, sO, X_BYTES); srd(A, sD, 896); srd(A, sB, 896)
    def dmaW(k):
        for i in range(2):
            A(f"s_add_u32 m0, {s(s_lb)}, {(k % NSW)*2048 + i*1024}")
            A(f"s_add_u32 {s(s_t0)}, {s(s_wb)}, {(16*k + 8*i)*896}")
            A(f"buffer_load_dwordx4 {v(vWg)}, {s(sW2,4)}, {s(s_t0)} offen lds")
            Q.issue(("W", k))
    def ldH(k):
        for tt in range(2):
            A(f"s_add_u32 {s(s_t0)}, {s(s_hb)}, {k*1024 + tt*112*1024}")
            A(f"buffer_load_dwordx4 {v(hb[k % DH][tt],4)}, {v(vH)}, {s(sH,4)}, {s(s_t0)} offen sc1")
            Q.issue(("H", k))
    for k in range(NSW): dmaW(k)
    A(f"v_lshrrev_b32 {v(t0)}, 3, v0")
    A(f"v_and_b32 {v(t1)}, 7, v0")
    A(f"v_mul_u32_u24 {v(vT)}, 896, {v(t0)}")
    A(f"v_lshl_add_u32 {v(vT)}, {v(t1)}, 4, {v(vT)}")
    A(f"v_lshlrev_b32 {v(vY)}, 15, {v(t1)}")
    A(f"v_lshl_add_u32 {v(vY)}, {v(t0)}, 2, {v(vY)}")
    A(f"s_mul_i32 {s(48)}, {s(s_rb)}, {64*896}")
    A(f"s_lshl_b32 {s(s_t0)}, {s(s_cb)}, 7")
    A(f"s_add_u32 {s(48)}, {s(48)}, {s(s_t0)}")
    A(f"buffer_load_dwordx4 {v(xr,4)}, {v(vT)}, {s(sX,4)}, {s(48)} offen")
    A(f"s_add_u32 {s(49)}, {s(48)}, {32*896}")
    A(f"buffer_load_dwordx4 {v(xr+4,4)}, {v(vT)}, {s(sX,4)}, {s(49)} offen")
    A(f"v_lshlrev_b32 {v(t2)}, 4, {v(t1)}")
    A(f"buffer_load_dwordx4 {v(dk,4)}, {v(t2)}, {s(sD,4)}, {s(s_t0)} offen")
    A(f"buffer_load_dwordx4 {v(bb,4)}, {v(t2)}, {s(sB,4)}, {s(s_t0)} offen")
    Q.issue("epi", 4)
    h_hook(A)
    for k in range(DH): ldH(k)
    A(f"v_lshrrev_b32 {v(t0)}, 3, v0")
    A(f"v_lshlrev_b32 {v(t0)}, 3, {v(t0)}")
    A(f"s_lshl_b32 {s(s_t0)}, {s(s_rb)}, 9")
    A(f"s_add_u32 {s(s_t0)}, {s(s_t0)}, {ST_OFF}")
    A(f"buffer_load_dwordx2 {v(st,2)}, {v(t0)}, {s(sH,4)}, {s(s_t0)} offen sc1")
    A(f"buffer_load_dwordx2 {v(st+2,2)}, {v(t0)}, {s(sH,4)}, {s(s_t0)} offen offset:256 sc1")
    Q.issue("epi", 2)
    def rdA(k, buf):
        L = []
        for dt in range(2):
            for h in range(2):
                L.append(f"ds_read_b64_tr_b16 {v(fA[buf][dt]+2*h,2)}, {v(vA[dt])} offset:{(k % NSW)*2048 + h*1024}")
        return L
    Q.wait(("W", 0))
    stamp(A, 1)
    for x in rdA(0, 0): A(x)
    for k in range(28):
        buf = k & 1
        if k + 1 < 28: Q.wait(("W", k + 1))
        Q.wait(("H", k))
        A("s_waitcnt lgkmcnt(0)")
        rl = rdA(k + 1, buf ^ 1) if k + 1 < 28 else []
        n = 0
        for dt in range(2):
            for tt in range(2):
                cin = "0" if k == 0 else v(acc[dt][tt], 16)
                A(f"v_mfma_f32_32x32x16_bf16 {v(acc[dt][tt],16)}, {v(fA[buf][dt],4)}, {v(hb[k % DH][tt],4)}, {cin}")
                if n < 2:
                    for x in rl[2*n:2*n+2]: A(x)
                if n == 1 and k + NSW < 28 and k >= 0:
                    dmaW(k + NSW)
                if n == 3 and k + DH < 28: ldH(k + DH)
                n += 1
        if k == 20:
            y_hook(A)
            A(f"s_lshl_b32 {s(s_t0)}, {s(s_cb)}, 18")
            A(f"s_lshl_b32 {s(s_t1)}, {s(s_rb)}, 8")
            A(f"s_add_u32 {s(s_t0)}, {s(s_t0)}, {s(s_t1)}")
            A(f"s_add_u32 {s(s_t0)}, {s(s_t0)}, {Y_OFF}")
            for it in range(2):
                for i in range(4):
                    A(f"s_add_u32 {s(s_t1)}, {s(s_t0)}, {i*8192 + it*128}")
                    A(f"buffer_load_dword {v(yr+4*it+i)}, {v(vY)}, {s(sH,4)}, {s(s_t1)} offen sc1")
                    Q.issue("y")
    stamp(A, 2)
    A(f"v_and_b32 {v(t0)}, 31, {v(lane)}")
    A(f"v_mul_u32_u24 {v(t0)}, 272, {v(t0)}")
    A(f"v_lshrrev_b32 {v(t1)}, 5, {v(lane)}")
    A(f"v_lshl_add_u32 {v(t0)}, {v(t1)}, 4, {v(t0)}")
    A(f"v_add_u32 {v(t0)}, {s(s_lb)}, {v(t0)}")
    for dt in range(2):
        for tt in range(2):
            for g in range(4):
                A(f"ds_write_b128 {v(t0)}, {v(acc[dt][tt]+4*g,4)} offset:{tt*32*272 + (32*dt + 8*g)*4}")
    Q.wait_all()
    Df = acc[0][0]; Bf = acc[0][0] + 8
    A("s_waitcnt lgkmcnt(0)")
    for i in range(4):
        A(f"v_lshlrev_b32 {v(Df+2*i)}, 16, {v(dk+i)}")
        A(f"v_and_b32 {v(Df+2*i+1)}, 0xffff0000, {v(dk+i)}")
        A(f"v_lshlrev_b32 {v(Bf+2*i)}, 16, {v(bb+i)}")
        A(f"v_and_b32 {v(Bf+2*i+1)}, 0xffff0000, {v(bb+i)}")
    A("s_barrier")
    stamp(A, 3)
    A(f"v_lshrrev_b32 {v(t0)}, 3, v0")
    A(f"v_mul_u32_u24 {v(t0)}, 272, {v(t0)}")
    A(f"v_and_b32 {v(t1)}, 7, v0")
    A(f"v_lshl_add_u32 {v(t0)}, {v(t1)}, 5, {v(t0)}")
    S = [acc[0][1], acc[1][0]]
    X8 = acc[1][1]; Y8 = acc[1][1] + 8
    O = hb[0][0]
    for it in range(2):
        for w in range(4):
            dst = (acc[0][1] if w < 2 else acc[1][0]) + 8*(w & 1)
            A(f"ds_read_b128 {v(dst,4)}, {v(t0)} offset:{w*PW + it*32*272}")
            A(f"ds_read_b128 {v(dst+4,4)}, {v(t0)} offset:{w*PW + it*32*272 + 16}")
        for i in range(4):
            A(f"v_lshlrev_b32 {v(X8+2*i)}, 16, {v(xr+4*it+i)}")
            A(f"v_and_b32 {v(X8+2*i+1)}, 0xffff0000, {v(xr+4*it+i)}")
            A(f"v_lshlrev_b32 {v(Y8+2*i)}, 16, {v(yr+4*it+i)}")
            A(f"v_and_b32 {v(Y8+2*i+1)}, 0xffff0000, {v(yr+4*it+i)}")
        sp = st + 2*it
        for p in range(4): A(f"v_pk_add_f32 {v(Y8+2*p,2)}, {v(Y8+2*p,2)}, {v(X8+2*p,2)}")
        for p in range(4): A(f"v_pk_add_f32 {v(X8+2*p,2)}, {v(X8+2*p,2)}, {v(sp,2)} op_sel_hi:[1,0] neg_lo:[0,1] neg_hi:[0,1]")
        for p in range(4): A(f"v_pk_mul_f32 {v(X8+2*p,2)}, {v(X8+2*p,2)}, {v(sp,2)} op_sel:[0,1] op_sel_hi:[1,1]")
        for p in range(4): A(f"v_pk_fma_f32 {v(Y8+2*p,2)}, {v(X8+2*p,2)}, {v(Df+2*p,2)}, {v(Y8+2*p,2)}")
        for p in range(4): A(f"v_pk_add_f32 {v(Y8+2*p,2)}, {v(Y8+2*p,2)}, {v(Bf+2*p,2)}")
        A("s_waitcnt lgkmcnt(0)")
        a0, a1 = acc[0][1], acc[1][0]
        for p in range(4): A(f"v_pk_add_f32 {v(a0+2*p,2)}, {v(a0+2*p,2)}, {v(a0+8+2*p,2)}")
        for p in range(4): A(f"v_pk_add_f32 {v(a1+2*p,2)}, {v(a1+2*p,2)}, {v(a1+8+2*p,2)}")
        for p in range(4): A(f"v_pk_add_f32 {v(a0+2*p,2)}, {v(a0+2*p,2)}, {v(a1+2*p,2)}")
        for p in range(4): A(f"v_pk_add_f32 {v(Y8+2*p,2)}, {v(Y8+2*p,2)}, {v(a0+2*p,2)}")
        o = hb[it][0]
        for p in range(4): A(f"v_cvt_pk_bf16_f32 {v(o+p)}, {v(Y8+2*p)}, {v(Y8+2*p+1)}")
        A(f"buffer_store_dwordx4 {v(o,4)}, {v(vT)}, {s(sO,4)}, {s(48 + it)} offen")
    stamp(A, 4)
    if DIAG:
        A("s_waitcnt vmcnt(0)")
        stamp(A, 5)
    dump_stamps(A, 6, 2, sH, t0, t1)
    A("s_endpgm")
    return R.hi
```

```python
from common import *

def emit_ln(A, sid, publish=None, lds0=0):
    sX, sWS = 8, 12
    s_wv, s_t0, s_t1, s_msk = 16, 17, 18, 19
    PITCH = 912
    stamp(A, 0)
    A(f"s_load_dwordx2 {s(sX,2)}, s[0:1], {KA['x']}")
    A(f"s_load_dwordx2 {s(sWS,2)}, s[0:1], {KA['ws']}")
    R = Regs(3)
    lane = R.alloc(); t0, t1, t2, t3 = [R.alloc() for _ in range(4)]
    vrow = R.alloc()
    raw = R.alloc(28, 4)
    X = R.alloc(56, 2)
    acc = R.alloc(8, 2)
    mp = R.alloc(2, 2); rp = R.alloc(2, 2)
    A(f"v_lshrrev_b32 {v(t0)}, 6, v0")
    A(f"v_and_b32 {v(lane)}, 63, v0")
    A(f"v_readfirstlane_b32 {s(s_wv)}, {v(t0)}")
    A(f"v_lshrrev_b32 {v(vrow)}, 3, v0")
    A(f"v_and_b32 {v(t1)}, 7, v0")
    A(f"v_mul_u32_u24 {v(t2)}, 896, {v(vrow)}")
    A(f"v_lshl_add_u32 {v(t2)}, {v(t1)}, 4, {v(t2)}")
    A(f"s_mul_i32 {s(s_t0)}, {s(sid)}, {32*896}")
    A(f"s_mov_b32 {s(s_msk)}, 0xffff0000")
    A("s_waitcnt lgkmcnt(0)")
    srd(A, sX, X_BYTES); srd(A, sWS, WS_USED)
    for i in range(7):
        A(f"buffer_load_dwordx4 {v(raw+4*i,4)}, {v(t2)}, {s(sX,4)}, {s(s_t0)} offen offset:{128*i}")
    vL = R.alloc()
    A(f"v_mul_u32_u24 {v(vL)}, {PITCH}, {v(vrow)}")
    A(f"v_lshl_add_u32 {v(vL)}, {v(t1)}, 4, {v(vL)}")
    if lds0: A(f"v_add_u32 {v(vL)}, {lds0}, {v(vL)}")
    for i in range(7):
        A(f"s_waitcnt vmcnt({6-i})")
        for w in range(4):
            A(f"v_lshlrev_b32 {v(X+8*i+2*w)}, 16, {v(raw+4*i+w)}")
            A(f"v_and_b32 {v(X+8*i+2*w+1)}, 0xffff0000, {v(raw+4*i+w)}")
    stamp(A, 1)
    for p in range(4): A(f"v_pk_add_f32 {v(acc+2*p,2)}, {v(X+2*p,2)}, {v(X+8+2*p,2)}")
    for i in range(2, 7):
        for p in range(4): A(f"v_pk_add_f32 {v(acc+2*p,2)}, {v(acc+2*p,2)}, {v(X+8*i+2*p,2)}")
    def fold(dst):
        A(f"v_pk_add_f32 {v(acc,2)}, {v(acc,2)}, {v(acc+2,2)}")
        A(f"v_pk_add_f32 {v(acc+4,2)}, {v(acc+4,2)}, {v(acc+6,2)}")
        A(f"v_pk_add_f32 {v(acc,2)}, {v(acc,2)}, {v(acc+4,2)}")
        A(f"v_add_f32 {v(dst)}, {v(acc)}, {v(acc+1)}")
        A(f"v_add_f32 {v(dst)}, {v(dst)}, {v(dst)} quad_perm:[1,0,3,2] row_mask:0xf bank_mask:0xf")
        A(f"v_add_f32 {v(dst)}, {v(dst)}, {v(dst)} quad_perm:[2,3,0,1] row_mask:0xf bank_mask:0xf")
        A(f"v_add_f32 {v(dst)}, {v(dst)}, {v(dst)} row_half_mirror row_mask:0xf bank_mask:0xf")
    fold(t0)
    inv = f32bits(1.0/448)
    A(f"v_mul_f32 {v(mp)}, {inv}, {v(t0)}")
    D = raw
    for i in range(7):
        for p in range(4): A(f"v_pk_add_f32 {v(D+2*p,2)}, {v(X+8*i+2*p,2)}, {v(mp,2)} op_sel_hi:[1,0] neg_lo:[0,1] neg_hi:[0,1]")
        for p in range(4):
            if i == 0: A(f"v_pk_mul_f32 {v(acc+2*p,2)}, {v(D+2*p,2)}, {v(D+2*p,2)}")
            else: A(f"v_pk_fma_f32 {v(acc+2*p,2)}, {v(D+2*p,2)}, {v(D+2*p,2)}, {v(acc+2*p,2)}")
    fold(t1)
    A(f"v_mul_f32 {v(t1)}, {inv}, {v(t1)}")
    A(f"v_cvt_pk_bf16_f32 {v(t2)}, {v(mp)}, {v(t1)}")
    A(f"v_lshlrev_b32 {v(mp)}, 16, {v(t2)}")
    A(f"v_and_b32 {v(t1)}, 0xffff0000, {v(t2)}")
    A(f"v_add_f32 {v(t1)}, {f32bits(1e-5)}, {v(t1)}")
    A(f"v_cvt_pk_bf16_f32 {v(t1)}, {v(t1)}, {v(t1)}")
    A(f"v_and_b32 {v(t1)}, 0xffff0000, {v(t1)}")
    A(f"v_sqrt_f32 {v(t1)}, {v(t1)}")
    A(f"v_cvt_pk_bf16_f32 {v(t1)}, {v(t1)}, {v(t1)}")
    A(f"v_and_b32 {v(t1)}, 0xffff0000, {v(t1)}")
    A(f"v_rcp_f32 {v(mp+1)}, {v(t1)}")
    aug = R.alloc(4, 4); zer = R.alloc(4, 4)
    A(f"v_xor_b32 {v(t2)}, 0x80000000, {v(mp)}")
    A(f"v_lshrrev_b32 {v(t3)}, 16, {v(t2)}")
    A(f"v_and_or_b32 {v(aug)}, {v(t2)}, {s(s_msk)}, {v(t3)}")
    A(f"v_lshrrev_b32 {v(aug+1)}, 16, {v(t1)}")
    A(f"v_mov_b32 {v(aug+2)}, 0"); A(f"v_mov_b32 {v(aug+3)}, 0")
    for i in range(4): A(f"v_mov_b32 {v(zer+i)}, 0")
    A(f"s_lshl_b32 {s(s_t0)}, {s(sid)}, 8")
    A(f"s_add_u32 {s(s_t0)}, {s(s_t0)}, {ST_OFF}")
    A(f"v_lshlrev_b32 {v(t2)}, 3, {v(vrow)}")
    A(f"v_and_b32 {v(t3)}, 7, {v(lane)}")
    A(f"v_cmp_eq_u32 vcc, 0, {v(t3)}")
    A(f"s_and_saveexec_b64 s[20:21], vcc")
    A(f"buffer_store_dwordx2 {v(mp,2)}, {v(t2)}, {s(sWS,4)}, {s(s_t0)} offen sc1")
    A(f"s_lshl_b32 {s(s_t0)}, {s(sid)}, 10")
    A(f"s_add_u32 {s(s_t0)}, {s(s_t0)}, {AUGB_OFF}")
    A(f"v_lshlrev_b32 {v(t2)}, 4, {v(vrow)}")
    A(f"buffer_store_dwordx4 {v(aug,4)}, {v(t2)}, {s(sWS,4)}, {s(s_t0)} offen sc1")
    A(f"buffer_store_dwordx4 {v(zer,4)}, {v(t2)}, {s(sWS,4)}, {s(s_t0)} offen offset:512 sc1")
    A(f"s_mov_b64 exec, s[20:21]")
    if publish: publish(A, "stats")
    stamp(A, 2)
    for i in range(7):
        for p in range(4): A(f"v_pk_add_f32 {v(X+8*i+2*p,2)}, {v(X+8*i+2*p,2)}, {v(mp,2)} op_sel_hi:[1,0] neg_lo:[0,1] neg_hi:[0,1]")
        for p in range(4): A(f"v_cvt_pk_bf16_f32 {v(D+p)}, {v(X+8*i+2*p)}, {v(X+8*i+2*p+1)}")
        for p in range(4):
            A(f"v_lshlrev_b32 {v(X+8*i+2*p)}, 16, {v(D+p)}")
            A(f"v_and_b32 {v(X+8*i+2*p+1)}, 0xffff0000, {v(D+p)}")
        for p in range(4): A(f"v_pk_mul_f32 {v(X+8*i+2*p,2)}, {v(X+8*i+2*p,2)}, {v(mp,2)} op_sel:[0,1] op_sel_hi:[1,1]")
        o = D + 8 + 4*(i & 1)
        for p in range(4): A(f"v_cvt_pk_bf16_f32 {v(o+p)}, {v(X+8*i+2*p)}, {v(X+8*i+2*p+1)}")
        A(f"ds_write_b128 {v(vL)}, {v(o,4)} offset:{128*i}")
    A("s_waitcnt lgkmcnt(0)")
    A("s_barrier")
    stamp(A, 3)
    A(f"v_lshrrev_b32 {v(t0)}, 4, {v(lane)}")
    A(f"v_bfe_u32 {v(t1)}, {v(lane)}, 2, 2")
    A(f"v_lshl_add_u32 {v(t1)}, {v(t0)}, 3, {v(t1)}")
    A(f"v_mul_u32_u24 {v(t1)}, {PITCH}, {v(t1)}")
    A(f"v_and_b32 {v(t2)}, 3, {v(lane)}")
    A(f"v_lshl_add_u32 {v(t1)}, {v(t2)}, 3, {v(t1)}")
    A(f"s_lshl_b32 {s(s_t0)}, {s(s_wv)}, 5")
    if lds0: A(f"s_add_u32 {s(s_t0)}, {s(s_t0)}, {lds0}")
    A(f"v_add_u32 {v(t1)}, {s(s_t0)}, {v(t1)}")
    A(f"v_and_b32 {v(t2)}, 15, {v(lane)}")
    A(f"v_lshlrev_b32 {v(t2)}, 6, {v(t2)}")
    A(f"v_lshl_add_u32 {v(t2)}, {v(t0)}, 4, {v(t2)}")
    A(f"s_mul_i32 {s(s_t0)}, {s(sid)}, 28672")
    A(f"s_lshl_b32 {s(s_t1)}, {s(s_wv)}, 10")
    A(f"s_add_u32 {s(s_t0)}, {s(s_t0)}, {s(s_t1)}")
    A(f"s_add_u32 {s(s_t0)}, {s(s_t0)}, {XT_OFF}")
    for k in range(7):
        A(f"ds_read_b64_tr_b16 {v(X+4*k,2)}, {v(t1)} offset:{128*k}")
        A(f"ds_read_b64_tr_b16 {v(X+4*k+2,2)}, {v(t1)} offset:{128*k + 4*PITCH}")
    for k in range(7):
        A(f"s_waitcnt lgkmcnt({2*(6-k)})")
        A(f"buffer_store_dwordx4 {v(X+4*k,4)}, {v(t2)}, {s(sWS,4)}, {s(s_t0)} offen sc1")
        if k < 6: A(f"s_add_u32 {s(s_t0)}, {s(s_t0)}, 4096")
    if publish: publish(A, "xt")
    stamp(A, 4)
    if DIAG:
        A("s_waitcnt vmcnt(0)")
        stamp(A, 5)
    dump_stamps(A, 6, 2, sWS, t0, t1)
    A("s_endpgm")
    return R.hi
```

```python
from common import *
from g1 import VmQ
import math, os
OPT = os.environ.get('SOPT', '')

UEXP = list(range(8)) + [256 + 2*i for i in range(4)] + [512, 516, 768, 772] + [1024, 1280, 1536, 1792, 2048]
def bf16_round_int(l):
    import struct
    u = struct.unpack("<I", struct.pack("<f", float(l)))[0]
    u = (u + 0x7FFF + ((u >> 16) & 1)) & 0xFFFF0000
    return int(struct.unpack("<f", struct.pack("<I", u))[0])
def rowcol(lv):
    if lv == 2048: return 20, 0
    col = (lv & 255) >> 3
    if lv < 256: row = lv & 7
    elif lv < 512: row = 8 + ((lv & 7) >> 1)
    elif lv < 1024: row = 12 + 2 * ((lv >> 8) & 1) + ((lv & 7) >> 2)
    else: row = 16 + ((lv >> 8) & 3)
    assert UEXP[row] + 8 * col == lv
    return row, col
ZERO_SLOT = 6144
def lag_table():
    P = [ZERO_SLOT] * 4
    for lag in range(2048):
        r, c = rowcol(bf16_round_int(lag))
        P.append((r * 32 + c) * 8)
    P += [ZERO_SLOT] * 12
    return P
def table_text():
    P = lag_table()
    o = ".p2align 8\n.type lag_table,@object\nlag_table:\n"
    for i in range(0, len(P), 16):
        o += ".short " + ",".join(str(x) for x in P[i:i+16]) + "\n"
    o += ".size lag_table, .-lag_table\n"
    return o

T0 = 0; TP = 6160
STG = 16384
KC = 12800; KCP = 4160; KCH = 4 * KCP
XB = KC + 2 * KCH; XP = 4608

def emit_s(A, sid, xt_hook=lambda A: None, publish=None, pre=None, dumpK=False):
    sP = [8, 12, 16, 20, 24, 28]
    sWS = 32
    s_wv, s_ch, s_mh, s_t0, s_t1, s_ldt = 36, 37, 38, 39, 40, 41
    s_tb = 42
    Q = VmQ(A)
    stamp(A, 0)
    names = ["Are", "Aim", "Bre", "Bim", "Cre", "Cim"]
    for k, nm in enumerate(names):
        A(f"s_load_dwordx2 {s(sP[k],2)}, s[0:1], {KA[nm]}")
    A(f"s_load_dwordx2 {s(sWS,2)}, s[0:1], {KA['ws']}")
    A(f"s_load_dwordx2 s[44:45], s[0:1], {KA['ldt']}")
    R = Regs(3)
    lane = R.alloc(); t0, t1, t2, t3, t4, t5 = [R.alloc() for _ in range(6)]
    prm = R.alloc(6); idx = R.alloc(6, 2); dt = R.alloc()
    xr = R.alloc(8, 4)
    A(f"v_lshrrev_b32 {v(t0)}, 6, v0")
    A(f"v_and_b32 {v(lane)}, 63, v0")
    A(f"v_readfirstlane_b32 {s(s_wv)}, {v(t0)}")
    A(f"s_getpc_b64 {s(s_tb,2)}")
    A.label(f"L_s_tb_{id(A)}")
    A(f"s_add_u32 {s(s_tb)}, {s(s_tb)}, lag_table-L_s_tb_{id(A)}")
    A(f"s_addc_u32 {s(s_tb+1)}, {s(s_tb+1)}, 0")
    A(f"v_lshlrev_b32 {v(t1)}, 4, v0")
    A(f"global_load_dwordx4 {v(idx,4)}, {v(t1)}, {s(s_tb,2)}")
    A(f"global_load_dwordx2 {v(idx+4,2)}, {v(t1)}, {s(s_tb,2)} offset:16")
    Q.issue("idx", 2)
    A(f"s_lshr_b32 {s(s_ch)}, {s(s_wv)}, 1")
    A(f"s_and_b32 {s(s_mh)}, {s(s_wv)}, 1")
    A("s_waitcnt lgkmcnt(0)")
    for k in range(6): srd(A, sP[k], P_BYTES)
    srd(A, sWS, WS_USED)
    A(f"s_lshl_b32 {s(s_t0)}, {s(sid)}, 2")
    A(f"s_load_dword {s(s_ldt)}, s[44:45], {s(s_t0)}")
    A(f"s_lshl_b32 {s(s_t0)}, {s(sid)}, 1")
    A(f"s_add_u32 {s(s_t0)}, {s(s_t0)}, {s(s_ch)}")
    A(f"s_lshl_b32 {s(s_t0)}, {s(s_t0)}, 9")
    A(f"s_lshl_b32 {s(s_t1)}, {s(s_mh)}, 8")
    A(f"s_add_u32 {s(s_t0)}, {s(s_t0)}, {s(s_t1)}")
    A(f"v_lshlrev_b32 {v(t1)}, 2, {v(lane)}")
    for k in range(6):
        A(f"buffer_load_dword {v(prm+k)}, {v(t1)}, {s(sP[k],4)}, {s(s_t0)} offen")
        Q.issue("prm")
    if pre: pre(A)
    wadr = [R.alloc() for _ in range(8)]
    radr = [R.alloc(), R.alloc()]
    A(f"s_lshl_b32 {s(s_t0)}, {s(s_wv)}, 14")
    A(f"s_add_u32 {s(s_t0)}, {s(s_t0)}, {STG}")
    def swz(dst, n, tmp):
        A(f"v_bfe_u32 {v(dst)}, {v(n)}, 1, 1")
        A(f"v_lshlrev_b32 {v(dst)}, 2, {v(dst)}")
        A(f"v_and_b32 {v(tmp)}, 1, {v(n)}")
        A(f"v_or_b32 {v(dst)}, {v(dst)}, {v(tmp)}")
        A(f"v_bfe_u32 {v(tmp)}, {v(n)}, 2, 1")
        A(f"v_lshl_or_b32 {v(dst)}, {v(tmp)}, 1, {v(dst)}")
    swz(t2, lane, t3)
    A(f"v_lshlrev_b32 {v(t3)}, 7, {v(lane)}")
    A(f"v_lshl_add_u32 {v(t3)}, {v(t2)}, 4, {v(t3)}")
    A(f"v_add_u32 {v(wadr[0])}, {s(s_t0)}, {v(t3)}")
    for c in range(1, 8): A(f"v_xor_b32 {v(wadr[c])}, {c << 4}, {v(wadr[0])}")
    A(f"v_lshrrev_b32 {v(t1)}, 5, {v(lane)}")
    A(f"v_bfe_u32 {v(t2)}, {v(lane)}, 2, 2")
    A(f"v_lshl_add_u32 {v(t1)}, {v(t1)}, 2, {v(t2)}")
    swz(t2, t1, t3)
    A(f"v_bfe_u32 {v(t3)}, {v(lane)}, 4, 1")
    A(f"v_lshlrev_b32 {v(t3)}, 1, {v(t3)}")
    A(f"v_bfe_u32 {v(t4)}, {v(lane)}, 1, 1")
    A(f"v_add_u32 {v(t3)}, {v(t3)}, {v(t4)}")
    A(f"v_xor_b32 {v(t3)}, {v(t3)}, {v(t2)}")
    A(f"v_lshlrev_b32 {v(t4)}, 7, {v(t1)}")
    A(f"v_lshl_add_u32 {v(t4)}, {v(t3)}, 4, {v(t4)}")
    A(f"v_and_b32 {v(t5)}, 1, {v(lane)}")
    A(f"v_lshl_add_u32 {v(t4)}, {v(t5)}, 3, {v(t4)}")
    A(f"v_add_u32 {v(radr[0])}, {s(s_t0)}, {v(t4)}")
    A(f"v_xor_b32 {v(radr[1])}, 64, {v(radr[0])}")
    A("s_waitcnt lgkmcnt(0)")
    A(f"s_lshl_b32 {s(s_t0)}, {s(s_ldt)}, 16")
    A(f"s_and_b32 {s(s_t1)}, {s(s_ldt)}, 0xffff0000")
    A(f"s_cmp_eq_u32 {s(s_ch)}, 0")
    A(f"s_cselect_b32 {s(s_t0)}, {s(s_t0)}, {s(s_t1)}")
    L2E = math.log2(math.e)
    import struct
    hi = struct.unpack("<f", struct.pack("<f", L2E))[0]; lo = L2E - hi
    A(f"v_mov_b32 {v(t0)}, {s(s_t0)}")
    A(f"v_mov_b32 {v(t1)}, {f32bits(hi)}")
    A(f"v_mul_f32 {v(t2)}, {v(t0)}, {v(t1)}")
    A(f"v_fma_f32 {v(t3)}, {v(t0)}, {v(t1)}, -{v(t2)}")
    A(f"v_fmac_f32 {v(t3)}, {f32bits(lo)}, {v(t0)}")
    A(f"v_exp_f32 {v(t2)}, {v(t2)}")
    A(f"v_mul_f32 {v(t4)}, {f32bits(math.log(2.0))}, {v(t2)}")
    A(f"v_fma_f32 {v(t2)}, {v(t4)}, {v(t3)}, {v(t2)}")
    A(f"v_cvt_pk_bf16_f32 {v(t2)}, {v(t2)}, {v(t2)}")
    A(f"v_and_b32 {v(dt)}, 0xffff0000, {v(t2)}")
    m0 = R.mark()
    D = R.alloc(16, 4)
    PV = R.alloc(32, 4); PU = R.alloc(24, 4)
    FR = R.alloc(64, 4)
    def pair(): return R.alloc(2, 2)
    Z1, Z2, Z4, Z8, Z16, Z32, Z256, W = [pair() for _ in range(8)]
    Cp, Bp = pair(), pair()
    Ua, Ub, U8, U9, U10, U11, U12, U13, U14 = [pair() for _ in range(9)]
    Va, Vb, Vc, Vd = [pair() for _ in range(4)]
    TT = [pair() for _ in range(8)]
    a2, br = R.alloc(), R.alloc()
    def cmuls(lst):
        assert len(lst) <= len(TT)
        for k, (d, P_, Q_) in enumerate(lst):
            A(f"v_pk_mul_f32 {v(TT[k],2)}, {v(P_,2)}, {v(Q_,2)} op_sel:[0,0] op_sel_hi:[0,1]")
        for k, (d, P_, Q_) in enumerate(lst):
            A(f"v_pk_fma_f32 {v(d,2)}, {v(P_,2)}, {v(Q_,2)}, {v(TT[k],2)} op_sel:[1,1,0] op_sel_hi:[1,0,1] neg_lo:[1,0,0]")
    def packU(m, a_, b_):
        A(f"v_cvt_pk_bf16_f32 {v(PU+m)}, {v(a_)}, {v(b_)}")
        A(f"v_cvt_pk_bf16_f32 {v(PU+12+m)}, -{v(a_+1)}, -{v(b_+1)}")
    def packV(m, a_, b_):
        A(f"v_cvt_pk_bf16_f32 {v(PV+m)}, {v(a_)}, {v(b_)}")
        A(f"v_cvt_pk_bf16_f32 {v(PV+16+m)}, {v(a_+1)}, {v(b_+1)}")
    Q.wait("prm")
    stamp(A, 1)
    for it in range(2):
        def unp(dst, k):
            if it == 0: A(f"v_lshlrev_b32 {v(dst)}, 16, {v(prm+k)}")
            else: A(f"v_and_b32 {v(dst)}, 0xffff0000, {v(prm+k)}")
        unp(t0, 0); unp(t1, 1); unp(Bp, 2); unp(Bp+1, 3); unp(Cp, 4); unp(Cp+1, 5)
        A(f"v_mul_f32 {v(t0)}, {v(dt)}, {v(t0)}")
        A(f"v_mul_f32 {v(t1)}, {v(dt)}, {v(t1)}")
        A(f"v_mul_f32 {v(a2)}, {f32bits(L2E)}, {v(t0)}")
        A(f"v_mul_f32 {v(br)}, {f32bits(1.0/(2*math.pi))}, {v(t1)}")
        A(f"v_mul_f32 {v(Bp)}, {v(dt)}, {v(Bp)}")
        A(f"v_mul_f32 {v(Bp+1)}, {v(dt)}, {v(Bp+1)}")
        zs = [(Z1, 0), (Z8, 3), (Z256, 8)]
        mg = [TT[0], TT[0]+1, TT[1]]; an = [TT[1]+1, TT[2], TT[2]+1]
        for k, (Z, e) in enumerate(zs):
            if e:
                A(f"v_ldexp_f32 {v(mg[k])}, {v(a2)}, {e}")
                A(f"v_ldexp_f32 {v(an[k])}, {v(br)}, {e}")
            else:
                A(f"v_mov_b32 {v(mg[k])}, {v(a2)}")
                A(f"v_mov_b32 {v(an[k])}, {v(br)}")
        for k in range(3): A(f"v_fract_f32 {v(an[k])}, {v(an[k])}")
        for k in range(3): A(f"v_exp_f32 {v(mg[k])}, {v(mg[k])}")
        for k, (Z, e) in enumerate(zs): A(f"v_cos_f32 {v(Z)}, {v(an[k])}")
        for k, (Z, e) in enumerate(zs): A(f"v_sin_f32 {v(Z+1)}, {v(an[k])}")
        for k, (Z, e) in enumerate(zs):
            A(f"v_mul_f32 {v(Z)}, {v(mg[k])}, {v(Z)}")
            A(f"v_mul_f32 {v(Z+1)}, {v(mg[k])}, {v(Z+1)}")
        cmuls([(W, Cp, Bp), (Z2, Z1, Z1), (Z16, Z8, Z8)])
        cmuls([(Ub, W, Z1), (U8, W, Z256), (Z4, Z2, Z2), (Z32, Z16, Z16), (Vd, Z8, Z16), (Ua, W, Z2)])
        packU(0, W, Ub)
        A(f"v_cvt_pk_bf16_f32 {v(PV)}, 1.0, {v(Z8)}")
        A(f"v_cvt_pk_bf16_f32 {v(PV+16)}, 0, {v(Z8+1)}")
        packV(1, Z16, Vd)
        cmuls([(Ub, Ub, Z2), (U9, U8, Z2), (U10, U8, Z4), (U12, U8, Z256), (Vb, Z8, Z32), (Vc, Z16, Z32), (Vd, Vd, Z32)])
        packU(1, Ua, Ub)
        packU(4, U8, U9)
        packV(2, Z32, Vb)
        packV(3, Vc, Vd)
        cmuls([(Ua, Ua, Z2), (Ub, Ub, Z2), (U11, U9, Z4), (U13, U12, Z4), (U14, U12, Z256), (Va, Z32, Z32), (Vb, Vb, Z32), (Vc, Vc, Z32)])
        packU(2, Ua, Ub)
        packU(5, U10, U11)
        packU(6, U12, U13)
        cmuls([(Vd, Vd, Z32), (Ua, Ua, Z2), (Ub, Ub, Z2), (U13, U14, Z4), (U12, U14, Z256)])
        packV(4, Va, Vb); packV(5, Vc, Vd)
        packU(3, Ua, Ub)
        packU(7, U14, U13)
        cmuls([(Va, Va, Z32), (Vb, Vb, Z32), (Vc, Vc, Z32), (Vd, Vd, Z32), (U13, U12, Z256)])
        packV(6, Va, Vb); packV(7, Vc, Vd)
        packU(8, U12, U13)
        cmuls([(Va, Va, Z32), (Vb, Vb, Z32), (Vc, Vc, Z32), (Vd, Vd, Z32), (U12, U13, Z256)])
        packV(8, Va, Vb); packV(9, Vc, Vd)
        cmuls([(Va, Va, Z32), (Vb, Vb, Z32), (Vc, Vc, Z32), (Vd, Vd, Z32), (U13, U12, Z256)])
        packV(10, Va, Vb); packV(11, Vc, Vd)
        packU(9, U12, U13)
        cmuls([(Va, Va, Z32), (Vb, Vb, Z32), (Vc, Vc, Z32), (Vd, Vd, Z32), (U12, U13, Z256)])
        packV(12, Va, Vb); packV(13, Vc, Vd)
        packU(10, U12, U12)
        cmuls([(Va, Va, Z32), (Vb, Vb, Z32), (Vc, Vc, Z32), (Vd, Vd, Z32)])
        packV(14, Va, Vb); packV(15, Vc, Vd)
        A(f"v_mov_b32 {v(PU+11)}, 0"); A(f"v_mov_b32 {v(PU+23)}, 0")
        for c in range(8):
            A(f"ds_write_b128 {v(wadr[c])}, {v(PV+4*c,4)}")
        for c in range(3):
            A(f"ds_write_b128 {v(wadr[c])}, {v(PU+4*c,4)} offset:8192")
            A(f"ds_write_b128 {v(wadr[4+c])}, {v(PU+12+4*c,4)} offset:8192")
        for ks in range(8):
            for h in range(2):
                A(f"ds_read_b64_tr_b16 {v(FR+8*ks+2*h,2)}, {v(radr[h])} offset:{8192 + 1024*ks}")
            for h in range(2):
                A(f"ds_read_b64_tr_b16 {v(FR+8*ks+4+2*h,2)}, {v(radr[h])} offset:{1024*ks}")
        for ks in range(8):
            A(f"s_waitcnt lgkmcnt({min(15, 4*(7-ks))})")
            cin = "0" if (it == 0 and ks == 0) else v(D, 16)
            A(f"v_mfma_f32_32x32x16_bf16 {v(D,16)}, {v(FR+8*ks,4)}, {v(FR+8*ks+4,4)}, {cin}")
    stamp(A, 2)
    A(f"s_mul_i32 {s(s_t0)}, {s(s_ch)}, {TP}")
    A(f"s_lshl_b32 {s(s_t1)}, {s(s_mh)}, 2")
    A(f"s_add_u32 {s(s_t0)}, {s(s_t0)}, {s(s_t1)}")
    A(f"v_lshrrev_b32 {v(t1)}, 5, {v(lane)}")
    A(f"v_lshlrev_b32 {v(t1)}, 10, {v(t1)}")
    A(f"v_and_b32 {v(t2)}, 31, {v(lane)}")
    A(f"v_lshl_add_u32 {v(t1)}, {v(t2)}, 3, {v(t1)}")
    A(f"v_add_u32 {v(t1)}, {s(s_t0)}, {v(t1)}")
    for g in range(3):
        for i in range(4):
            A(f"ds_write_b32 {v(t1)}, {v(D+4*g+i)} offset:{T0 + (8*g+i)*256}")
    A(f"v_mov_b32 {v(t2)}, 0")
    A(f"v_mov_b32 {v(t3)}, {s(s_t0)}")
    A(f"ds_write_b32 {v(t3)}, {v(t2)} offset:{T0 + ZERO_SLOT}")
    R.release(m0)
    xt_hook(A)
    A(f"v_lshrrev_b32 {v(t1)}, 3, v0")
    A(f"v_mul_u32_u24 {v(t1)}, 28672, {v(t1)}")
    A(f"v_and_b32 {v(t2)}, 7, v0")
    A(f"v_lshl_add_u32 {v(t1)}, {v(t2)}, 4, {v(t1)}")
    A(f"s_lshl_b32 {s(s_t0)}, {s(sid)}, 7")
    A(f"s_add_u32 {s(s_t0)}, {s(s_t0)}, {XT_OFF}")
    A(f"buffer_load_dwordx4 {v(xr,4)}, {v(t1)}, {s(sWS,4)}, {s(s_t0)} offen sc1")
    A(f"s_add_u32 {s(s_t0)}, {s(s_t0)}, {32*28672}")
    A(f"buffer_load_dwordx4 {v(xr+4,4)}, {v(t1)}, {s(sWS,4)}, {s(s_t0)} offen sc1")
    Q.issue("xt", 2)
    ia = R.alloc(12)
    Q.wait("idx")
    for k in range(6):
        A(f"v_and_b32 {v(ia+2*k)}, 0xffff, {v(idx+k)}")
        A(f"v_lshrrev_b32 {v(ia+2*k+1)}, 16, {v(idx+k)}")
    A("s_waitcnt lgkmcnt(0)")
    A("s_barrier")
    stamp(A, 3)
    G = R.alloc(24, 2); Dw = R.alloc(6, 2); Al = R.alloc(8, 4); vK = R.alloc()
    A(f"v_lshlrev_b32 {v(vK)}, 4, v0")
    A(f"v_add_u32 {v(vK)}, {KC + 32}, {v(vK)}")
    C0 = R.alloc(4, 4); C2 = R.alloc(4, 4)
    for ch in range(2):
        for k in range(12):
            A(f"ds_read_b64 {v(G+2*k,2)}, {v(ia+k)} offset:{T0 + ch*TP}")
        for k in range(12):
            if k % 4 == 0: A(f"s_waitcnt lgkmcnt({8 - k})")
            A(f"v_add_f32 {v(G+2*k)}, {v(G+2*k)}, {v(G+2*k+1)}")
        for m in range(6):
            A(f"v_cvt_pk_bf16_f32 {v(Dw+m)}, {v(G+4*m)}, {v(G+4*m+2)}")
        for m in range(5):
            A(f"v_alignbit_b32 {v(Al+m)}, {v(Dw+m+1)}, {v(Dw+m)}, 16")
        kb = ch * KCH
        for m in range(4): A(f"v_mov_b32 {v(C0+m)}, {v(Dw+2+m)}")
        A(f"ds_write_b128 {v(vK)}, {v(C0,4)} offset:{kb}")
        for m in range(4): A(f"v_mov_b32 {v(C2+m)}, {v(Dw+1+m)}")
        A(f"ds_write_b128 {v(vK)}, {v(C2,4)} offset:{kb + 2*KCP}")
        for m in range(4): A(f"v_mov_b32 {v(C0+m)}, {v(Al+1+m)}")
        A(f"ds_write_b128 {v(vK)}, {v(C0,4)} offset:{kb + KCP}")
        A(f"ds_write_b128 {v(vK)}, {v(Al,4)} offset:{kb + 3*KCP}")
        if dumpK:
            A(f"s_lshl_b32 {s(s_t0)}, {s(sid)}, 1")
            A(f"s_add_u32 {s(s_t0)}, {s(s_t0)}, {ch}")
            A(f"s_lshl_b32 {s(s_t0)}, {s(s_t0)}, 12")
            A(f"s_add_u32 {s(s_t0)}, {s(s_t0)}, {KT_OFF}")
            A(f"v_lshlrev_b32 {v(t1)}, 4, v0")
            A(f"buffer_store_dwordx4 {v(Dw+2,4)}, {v(t1)}, {s(sWS,4)}, {s(s_t0)} offen")
            Q.issue("dump")
    Zr = C2
    for m in range(4): A(f"v_mov_b32 {v(Zr+m)}, 0")
    A(f"v_and_b32 {v(t1)}, 15, {v(lane)}")
    A(f"v_lshrrev_b32 {v(t2)}, 1, {v(t1)}")
    A(f"v_mul_u32_u24 {v(t2)}, {KCP}, {v(t2)}")
    A(f"v_and_b32 {v(t1)}, 1, {v(t1)}")
    A(f"v_lshl_add_u32 {v(t2)}, {v(t1)}, 4, {v(t2)}")
    A(f"ds_write_b128 {v(t2)}, {v(Zr,4)} offset:{KC}")
    A(f"v_lshrrev_b32 {v(t1)}, 5, {v(lane)}")
    A(f"v_mul_u32_u24 {v(t1)}, {XP}, {v(t1)}")
    A(f"v_and_b32 {v(t2)}, 31, {v(lane)}")
    A(f"v_lshl_add_u32 {v(t1)}, {v(t2)}, 4, {v(t1)}")
    A(f"ds_write_b128 {v(t1)}, {v(Zr,4)} offset:{XB}")
    A(f"v_lshrrev_b32 {v(t1)}, 3, v0")
    A(f"v_lshlrev_b32 {v(t1)}, 6, {v(t1)}")
    A(f"v_bfe_u32 {v(t2)}, v0, 2, 1")
    A(f"v_mul_u32_u24 {v(t2)}, {XP}, {v(t2)}")
    A(f"v_add_u32 {v(t1)}, {v(t1)}, {v(t2)}")
    A(f"v_and_b32 {v(t2)}, 3, v0")
    A(f"v_lshl_add_u32 {v(t1)}, {v(t2)}, 4, {v(t1)}")
    Q.wait("xt")
    A(f"ds_write_b128 {v(t1)}, {v(xr,4)} offset:{XB + 512}")
    A(f"ds_write_b128 {v(t1)}, {v(xr+4,4)} offset:{XB + 512 + 2048}")
    R.release(m0)
    acc = R.alloc(32, 4)
    BF = [R.alloc(32, 4), R.alloc(32, 4)]
    AF = [R.alloc(4, 4) for _ in range(3)]
    vKa, vXa = R.alloc(), R.alloc()
    A(f"s_mul_i32 {s(s_t0)}, {s(s_ch)}, {KCH}")
    A(f"s_lshl_b32 {s(s_t1)}, {s(s_mh)}, 8")
    A(f"s_add_u32 {s(s_t0)}, {s(s_t0)}, {s(s_t1)}")
    A(f"s_add_u32 {s(s_t0)}, {s(s_t0)}, {KC + 56}")
    A(f"v_bfe_u32 {v(t1)}, {v(lane)}, 2, 2")
    A(f"v_mul_u32_u24 {v(t1)}, {KCP}, {v(t1)}")
    A(f"v_and_b32 {v(t2)}, 3, {v(lane)}")
    A(f"v_lshl_add_u32 {v(t1)}, {v(t2)}, 3, {v(t1)}")
    A(f"v_lshrrev_b32 {v(t2)}, 4, {v(lane)}")
    A(f"v_lshlrev_b32 {v(t3)}, 4, {v(t2)}")
    A(f"v_sub_u32 {v(t1)}, {v(t1)}, {v(t3)}")
    A(f"v_add_u32 {v(vKa)}, {s(s_t0)}, {v(t1)}")
    A(f"s_mul_i32 {s(s_t0)}, {s(s_ch)}, {XP}")
    A(f"s_lshl_b32 {s(s_t1)}, {s(s_mh)}, 8")
    A(f"s_sub_u32 {s(s_t0)}, {s(s_t0)}, {s(s_t1)}")
    A(f"s_add_u32 {s(s_t0)}, {s(s_t0)}, {XB + 288}")
    A(f"v_and_b32 {v(t1)}, 15, {v(lane)}")
    A(f"v_lshlrev_b32 {v(t1)}, 5, {v(t1)}")
    A(f"v_add_u32 {v(t1)}, {v(t1)}, {v(t3)}")
    A(f"v_add_u32 {v(vXa)}, {s(s_t0)}, {v(t1)}")
    A("s_waitcnt lgkmcnt(0)")
    A("s_barrier")
    stamp(A, 4)
    def rdB(a_, buf, w):
        return f"ds_read_b128 {v(BF[buf]+4*w,4)}, {v(vXa)} offset:{512*w + 64*(3-a_)}"
    def rdA(a_, vv, slot):
        return [f"ds_read_b64_tr_b16 {v(AF[slot]+2*h,2)}, {v(vKa)} offset:{64*a_ + 512*vv + 8*(1-h)}" for h in range(2)]
    for w in range(8): A(rdB(0, 0, w))
    seq = [(a_, vv) for a_ in range(4) for vv in range(8)]
    for k in range(2):
        for x in rdA(*seq[k], k % 3): A(x)
    lg = 8 + 4
    out = ["B0"] * 8 + ["A0"] * 2 + ["A1"] * 2
    def wait_for(tag):
        nonlocal out
        idxs = [i for i, t in enumerate(out) if t == tag]
        if not idxs: return
        n = len(out) - 1 - idxs[-1]
        A(f"s_waitcnt lgkmcnt({min(n, 15)})")
        if n <= 15: out = out[idxs[-1] + 1:]
    for k, (a_, vv) in enumerate(seq):
        wait_for(f"B{a_}"); wait_for(f"A{k}")
        buf = a_ & 1
        extra = []
        if k + 2 < len(seq):
            extra += [(x, f"A{k+2}") for x in rdA(*seq[k + 2], (k + 2) % 3)]
        if a_ < 3: extra.append((rdB(a_ + 1, buf ^ 1, vv), f"B{a_+1}"))
        for c in range(vv, 8):
            cin = "0" if (a_ == 0 and vv == 0) else v(acc+4*c, 4)
            A(f"v_mfma_f32_16x16x32_bf16 {v(acc+4*c,4)}, {v(AF[k % 3],4)}, {v(BF[buf]+4*(c-vv),4)}, {cin}")
            if extra:
                x, tag = extra.pop(0); A(x); out.append(tag)
        for x, tag in extra:
            A(x); out.append(tag)
    stamp(A, 5)
    A("s_barrier")
    vR = R.alloc()
    A(f"v_lshlrev_b32 {v(vR)}, 4, {v(lane)}")
    A(f"s_lshl_b32 {s(s_t0)}, {s(s_wv)}, 13")
    A(f"v_add_u32 {v(t1)}, {s(s_t0)}, {v(vR)}")
    for c in range(8):
        A(f"ds_write_b128 {v(t1)}, {v(acc+4*c,4)} offset:{1024*c}")
    A("s_waitcnt lgkmcnt(0)")
    A("s_barrier")
    A(f"s_lshl_b32 {s(s_t0)}, {s(s_wv)}, 11")
    A(f"v_add_u32 {v(t1)}, {s(s_t0)}, {v(vR)}")
    for cc in range(2):
        for w in range(4):
            A(f"ds_read_b128 {v(BF[cc]+4*w,4)}, {v(t1)} offset:{8192*w + 1024*cc}")
    A(f"v_and_b32 {v(t2)}, 15, {v(lane)}")
    A(f"v_lshlrev_b32 {v(t2)}, 6, {v(t2)}")
    A(f"v_lshrrev_b32 {v(t3)}, 4, {v(lane)}")
    A(f"v_lshl_add_u32 {v(t2)}, {v(t3)}, 4, {v(t2)}")
    A(f"s_lshl_b32 {s(s_t0)}, {s(sid)}, 13")
    A(f"s_lshl_b32 {s(s_t1)}, {s(s_wv)}, 11")
    A(f"s_add_u32 {s(s_t0)}, {s(s_t0)}, {s(s_t1)}")
    A(f"s_add_u32 {s(s_t0)}, {s(s_t0)}, {Y_OFF}")
    for cc in range(2):
        A(f"s_waitcnt lgkmcnt({4*(1-cc)})")
        b = BF[cc]
        for r_ in range(4):
            A(f"v_add_f32 {v(b+r_)}, {v(b+r_)}, {v(b+4+r_)}")
            A(f"v_add_f32 {v(b+8+r_)}, {v(b+8+r_)}, {v(b+12+r_)}")
        for r_ in range(4):
            A(f"v_cvt_pk_bf16_f32 {v(b+4+r_)}, {v(b+r_)}, {v(b+8+r_)}")
        A(f"buffer_store_dwordx4 {v(b+4,4)}, {v(t2)}, {s(sWS,4)}, {s(s_t0)} offen offset:{1024*cc} sc1")
    if publish: publish(A, "y")
    stamp(A, 6)
    dump_stamps(A, 8, 2, sWS, t0, t1)
    A("s_endpgm")
    return R.hi
```

```python
import sys
from build import *
import common
if len(sys.argv) > 3 and sys.argv[3] == 'diag':
    common.DIAG = True
import g1, ln, cs, sk, g2
which = sys.argv[1]
L0 = ("l0_kernel", [("ln", 64, ln.emit_ln), ("cs", 56, cs.emit_cs)], 81920)
if which == "g1":
    txt = build_file([L0, ("l1_kernel", [("g1", 224, g1.emit_g1)], 81920)])
if which == "s":
    txt = build_file([L0, ("l1_kernel", [("s", 224, lambda A, sid: sk.emit_s(A, sid, dumpK=True))], 81920)], tables=sk.table_text())
if which == "l3":
    txt = build_file([L0, ("l1_kernel", [("g1", 224, g1.emit_g1), ("s", 224, sk.emit_s)], 81920), ("l2_kernel", [("g2", 224, g2.emit_g2)], 81920)], tables=sk.table_text())
open(sys.argv[2], "w").write(txt)
```

```python
import sys
from common import *

import os
PREFETCH = os.environ.get('PF', '1') == '1'
PF_N = {'g1': 2, 'm': 3, 's': 3}
def build_kernel(kname, roles, sgpr=96):
    A = Asm()
    tot = sum(c for _, c, _ in roles)
    bases = {}; b = 0
    for nm, cnt, fn in roles:
        bases[nm] = b; b += cnt
    A(f"s_cmp_ge_u32 s2, {tot}")
    A(f"s_cbranch_scc1 L_exit_{kname}")
    for nm, cnt, fn in roles[:-1]:
        A(f"s_cmp_lt_u32 s2, {bases[nm] + cnt}")
        A(f"s_cbranch_scc1 L_{kname}_{nm}")
    hi = 1
    for nm, cnt, fn in [roles[-1]] + roles[:-1]:
        A.label(f"L_{kname}_{nm}")
        if PREFETCH:
            A("s_getpc_b64 s[4:5]")
            A.label(f"L_{kname}_{nm}_pc")
            A("v_lshlrev_b32 v1, 7, v0")
            A("v_cmp_gt_u32 vcc, 64, v0")
            A("s_and_saveexec_b64 s[6:7], vcc")
            A(f"s_cbranch_execz L_{kname}_{nm}_pf")
            npf = PF_N.get(nm, 1)
            for k in range(npf):
                A(f"v_min_u32 v1, L_{kname}_{nm}_end-L_{kname}_{nm}_pc-4, v1")
                A(f"global_load_dword v2, v1, s[4:5]")
                if k + 1 < npf: A("v_add_u32 v1, 0x2000, v1")
            A.label(f"L_{kname}_{nm}_pf")
            A("s_mov_b64 exec, s[6:7]")
        A(f"s_sub_u32 s3, s2, {bases[nm]}")
        hi = max(hi, fn(A, 3))
        A.label(f"L_{kname}_{nm}_end")
    A.label(f"L_exit_{kname}")
    A("s_endpgm")
    n = A.pad_hazards()
    txt = f".globl {kname}\n.p2align 8\n.type {kname},@function\n{kname}:\n" + A.text()
    return txt, hi, tot, n

def build_file(kernels, tables="", header=""):
    s_ = header
    body = ""; desc = ""; launches = ""; seen = {}
    for ki, (kname, roles, lds) in enumerate(kernels):
        DIAG_IDX[0] = ki
        if kname in seen:
            launches += seen[kname]; continue
        txt, hi, tot, n = build_kernel(kname, roles)
        seen[kname] = f"; @launch kernel={kname} grid=({tot},1,1) block=(256,1,1) lds={lds}\n"
        launches += seen[kname]
        body += txt
        vg = (hi + 7) // 8 * 8
        desc += kernel_desc(kname, vg)
        print(f"{kname}: wgs={tot} vgpr={hi} nops={n} lines={txt.count(chr(10))}", file=sys.stderr)
    out = s_ + launches + '.amdgcn_target "amdgcn-amd-amdhsa--gfx950"\n.text\n' + body + tables + '.section .rodata,"a"\n' + desc
    return out
```

```python
import sys
from build import *
import common
import g1, ln, cs, sk, g2
def empty(A, sid):
    A("s_endpgm"); return 8
L0 = ("l0_kernel", [("ln", 64, ln.emit_ln), ("cs", 56, cs.emit_cs)], 81920)
L1 = ("l1_kernel", [("g1", 224, g1.emit_g1), ("s", 224, sk.emit_s)], 81920)
L2 = ("l2_kernel", [("g2", 224, g2.emit_g2)], 81920)
E = lambda n: (f"e{n}_kernel", [("e", 8, empty)], 0)
T = sk.table_text()
open("v_base.s", "w").write(build_file([L0, L1, L2], tables=T))
open("v_post2.s", "w").write(build_file([L0, L1, L2, E(0), E(1)], tables=T))
open("v_pre1.s", "w").write(build_file([E(0), L0, L1, L2], tables=T))
open("v_x2.s", "w").write(build_file([L0, L1, L2, L0, L1, L2], tables=T).replace("", ""))
```

```python
import sys
import common
from common import *

import os
PREFETCH = os.environ.get('PF', '1') == '1'
PF_N = {'g1': 2, 'm': 3, 's': 3}
def build_kernel(kname, roles, sgpr=96):
    A = Asm()
    tot = sum(c for _, c, _ in roles)
    bases = {}; b = 0
    for nm, cnt, fn in roles:
        bases[nm] = b; b += cnt
    alias = {nm: fn for nm, cnt, fn in roles if isinstance(fn, tuple)}
    A(f"s_cmp_ge_u32 s2, {tot}")
    A(f"s_cbranch_scc1 L_exit_{kname}")
    for nm, cnt, fn in roles[:-1]:
        A(f"s_cmp_lt_u32 s2, {bases[nm] + cnt}")
        A(f"s_cbranch_scc1 L_{kname}_{nm}")
    hi = 1
    for nm, cnt, fn in [roles[-1]] + roles[:-1]:
        A.label(f"L_{kname}_{nm}")
        if PREFETCH:
            A("s_getpc_b64 s[4:5]")
            A.label(f"L_{kname}_{nm}_pc")
            A("v_lshlrev_b32 v1, 7, v0")
            A("v_cmp_gt_u32 vcc, 64, v0")
            A("s_and_saveexec_b64 s[6:7], vcc")
            A(f"s_cbranch_execz L_{kname}_{nm}_pf")
            npf = PF_N.get(nm, 1)
            for k in range(npf):
                A(f"v_min_u32 v1, L_{kname}_{nm}_end-L_{kname}_{nm}_pc-4, v1")
                A(f"global_load_dword v2, v1, s[4:5]")
                if k + 1 < npf: A("v_add_u32 v1, 0x2000, v1")
            A.label(f"L_{kname}_{nm}_pf")
            A("s_mov_b64 exec, s[6:7]")
        A(f"s_sub_u32 s3, s2, {bases[nm]}")
        if common.HD:
            hd_stamp(A, 4*DIAG_IDX[0] + 0, neg=True); hd_stamp(A, 4*DIAG_IDX[0] + 1)
            hi = 252
        hi = max(hi, fn(A, 3))
        A.label(f"L_{kname}_{nm}_end")
    if common.HD:
        import asmdsl
        out = []
        for x in A.ins:
            if x.op == "s_endpgm":
                B = Asm(); B("s_waitcnt vmcnt(0)"); hd_stamp(B, 4*DIAG_IDX[0] + 2); out += B.ins
            out.append(x)
        A.ins = out
    A.label(f"L_exit_{kname}")
    A("s_endpgm")
    n = A.pad_hazards()
    txt = f".globl {kname}\n.p2align 8\n.type {kname},@function\n{kname}:\n" + A.text()
    return txt, hi, tot, n

def build_file(kernels, tables="", header=""):
    s_ = header
    body = ""; desc = ""; launches = ""; seen = {}
    for ki, (kname, roles, lds) in enumerate(kernels):
        DIAG_IDX[0] = ki
        if kname in seen:
            launches += seen[kname]; continue
        txt, hi, tot, n = build_kernel(kname, roles)
        seen[kname] = f"; @launch kernel={kname} grid=({tot},1,1) block=(256,1,1) lds={lds}\n"
        launches += seen[kname]
        body += txt
        vg = (hi + 7) // 8 * 8
        desc += kernel_desc(kname, vg)
        print(f"{kname}: wgs={tot} vgpr={hi} nops={n} lines={txt.count(chr(10))}", file=sys.stderr)
    out = s_ + launches + '.amdgcn_target "amdgcn-amd-amdhsa--gfx950"\n.text\n' + body + tables + '.section .rodata,"a"\n' + desc
    return out
```

```python
from asmdsl import *
NAME = "parallel_sum__ssm_conv_s4__dense_activation_gelu__prompt"
KA = dict(x=0, Are=8, Aim=16, Bre=24, Bim=32, Cre=40, Cim=48, ldt=56, Dsk=64, bx=72, w1=80, b1=88, w2=96, b2=104, out=112, dbg=120, ws=128)
H_OFF = 0
XT_OFF = 0x700000
KT_OFF = 0x8C0000
Y_OFF = 0xA80000
ST_OFF = 0xC40000
AUGA_OFF = 0xC44000
AUGB_OFF = 0xC52000
WS_USED = 0xC62000
X_BYTES = 2048 * 448 * 2
W_BYTES = 448 * 1792 * 2
P_BYTES = 448 * 256 * 2

def srd(A, sreg, nbytes):
    A(f"s_mov_b32 {s(sreg+2)}, {nbytes}")
    A(f"s_mov_b32 {s(sreg+3)}, 0x20000")

def f32bits(x):
    import struct
    return "0x%08x" % struct.unpack("<I", struct.pack("<f", x))[0]

def kernel_desc(name, vgpr, sgpr=96):
    acc = (vgpr + 3) // 4 * 4
    return f""".p2align 6
.amdhsa_kernel {name}
  .amdhsa_next_free_vgpr {vgpr}
  .amdhsa_next_free_sgpr {sgpr}
  .amdhsa_accum_offset {acc}
  .amdhsa_group_segment_fixed_size 0
  .amdhsa_kernarg_size 136
  .amdhsa_user_sgpr_count 2
  .amdhsa_user_sgpr_kernarg_segment_ptr 1
  .amdhsa_system_sgpr_workgroup_id_x 1
  .amdhsa_float_denorm_mode_32 3
.end_amdhsa_kernel
"""

DIAG = False
DIAG_OFF = 0x1000000
DIAG_IDX = [0]
_SB = 60
def stamp(A, i):
    if DIAG: A(f"s_memrealtime {s(_SB + 2*i, 2)}")
def cstamp(A, i):
    if DIAG: A(f"s_memtime {s(_SB + 2*i, 2)}")
def dump_stamps(A, n, slot_sreg, sWS, vt0, vt1):
    if not DIAG: return
    A("s_waitcnt lgkmcnt(0)")
    A(f"s_lshl_b32 s58, {s(slot_sreg)}, 6")
    A(f"s_add_u32 s58, s58, {DIAG_OFF + DIAG_IDX[0] * 0x10000}")
    A(f"s_mov_b32 {s(sWS+2)}, 0x2000000")
    for i in range(n):
        A(f"v_mov_b32 {v(vt0)}, {s(_SB + 2*i)}")
        A(f"v_mov_b32 {v(vt1)}, {4*i}")
        A(f"buffer_store_dword {v(vt0)}, {v(vt1)}, {s(sWS,4)}, s58 offen")

HD = False
HD_N = [3]
def hd_stamp(A, word, neg=False, vt=(250, 251)):
    if not HD: return
    li = DIAG_IDX[0]
    A("s_memrealtime s[90:91]")
    A(f"s_load_dwordx2 s[92:93], s[0:1], {KA['dbg']}")
    A("s_waitcnt lgkmcnt(0)")
    A(f"s_add_u32 s92, s92, {512*(HD_N[0] - 1 - li)}")
    A("s_addc_u32 s93, s93, 0")
    if neg: A("s_not_b32 s90, s90")
    A(f"v_mov_b32 {v(vt[0])}, s90")
    A(f"v_mov_b32 {v(vt[1])}, {4*word}")
    A("s_mov_b64 s[94:95], exec")
    A("s_mov_b64 exec, 1")
    A(f"global_atomic_umax {v(vt[1])}, {v(vt[0])}, s[92:93] sc1")
    A("s_mov_b64 exec, s[94:95]")
```

```python
import sys
from build import *
import common
if len(sys.argv) > 1 and sys.argv[1] == 'hd': common.HD = True
import g1, ln, cs, sk, g2
def empty(A, sid):
    A("s_endpgm"); return 8
L0 = ("l0_kernel", [("ln", 64, ln.emit_ln), ("cs", 56, cs.emit_cs)], 81920)
L1 = ("l1_kernel", [("g1", 224, g1.emit_g1), ("s", 224, sk.emit_s)], 81920)
L2 = ("l2_kernel", [("g2", 224, g2.emit_g2)], 81920)
E = lambda n: (f"e{n}_kernel", [("e", 8, empty)], 0)
T = sk.table_text()
open("v_hd.s", "w").write(build_file([L0, L1, L2], tables=T))
```

```python
from asmdsl import *
NAME = "parallel_sum__ssm_conv_s4__dense_activation_gelu__prompt"
KA = dict(x=0, Are=8, Aim=16, Bre=24, Bim=32, Cre=40, Cim=48, ldt=56, Dsk=64, bx=72, w1=80, b1=88, w2=96, b2=104, out=112, dbg=120, ws=128)
H_OFF = 0
XT_OFF = 0x700000
KT_OFF = 0x8C0000
Y_OFF = 0xA80000
ST_OFF = 0xC40000
AUGA_OFF = 0xC44000
AUGB_OFF = 0xC52000
WS_USED = 0xC62000
X_BYTES = 2048 * 448 * 2
W_BYTES = 448 * 1792 * 2
P_BYTES = 448 * 256 * 2

def srd(A, sreg, nbytes):
    A(f"s_mov_b32 {s(sreg+2)}, {nbytes}")
    A(f"s_mov_b32 {s(sreg+3)}, 0x20000")

def f32bits(x):
    import struct
    return "0x%08x" % struct.unpack("<I", struct.pack("<f", x))[0]

def kernel_desc(name, vgpr, sgpr=96):
    acc = (vgpr + 3) // 4 * 4
    return f""".p2align 6
.amdhsa_kernel {name}
  .amdhsa_next_free_vgpr {vgpr}
  .amdhsa_next_free_sgpr {sgpr}
  .amdhsa_accum_offset {acc}
  .amdhsa_group_segment_fixed_size 0
  .amdhsa_kernarg_size 136
  .amdhsa_user_sgpr_count 2
  .amdhsa_user_sgpr_kernarg_segment_ptr 1
  .amdhsa_system_sgpr_workgroup_id_x 1
  .amdhsa_float_denorm_mode_32 3
.end_amdhsa_kernel
"""

DIAG = False
DIAG_OFF = 0x1000000
DIAG_IDX = [0]
_SB = 60
def stamp(A, i):
    if DIAG: A(f"s_memrealtime {s(_SB + 2*i, 2)}")
def cstamp(A, i):
    if DIAG: A(f"s_memtime {s(_SB + 2*i, 2)}")
def dump_stamps(A, n, slot_sreg, sWS, vt0, vt1):
    if not DIAG: return
    A("s_waitcnt lgkmcnt(0)")
    A(f"s_lshl_b32 s58, {s(slot_sreg)}, 6")
    A(f"s_add_u32 s58, s58, {DIAG_OFF + DIAG_IDX[0] * 0x10000}")
    A(f"s_mov_b32 {s(sWS+2)}, 0x2000000")
    for i in range(n):
        A(f"v_mov_b32 {v(vt0)}, {s(_SB + 2*i)}")
        A(f"v_mov_b32 {v(vt1)}, {4*i}")
        A(f"buffer_store_dword {v(vt0)}, {v(vt1)}, {s(sWS,4)}, s58 offen")

HD = False
HD_N = [3]
HD_CNT = [0]
def hd_stamp(A, word, neg=False, vt=(250, 251)):
    if not HD: return
    li = DIAG_IDX[0]
    HD_CNT[0] += 1
    lab = f"L_hd_{HD_CNT[0]}"
    A("s_and_b32 s90, s2, 0x1f")
    A("s_cmp_gt_u32 s90, 1")
    A(f"s_cbranch_scc1 {lab}")
    A("v_readfirstlane_b32 s90, v0")
    A("s_cmp_ge_u32 s90, 64")
    A(f"s_cbranch_scc1 {lab}")
    A("s_memrealtime s[90:91]")
    A(f"s_load_dwordx2 s[92:93], s[0:1], {KA['dbg']}")
    A("s_waitcnt lgkmcnt(0)")
    A(f"s_add_u32 s92, s92, {512*(HD_N[0] - 1 - li)}")
    A("s_addc_u32 s93, s93, 0")
    if neg: A("s_not_b32 s90, s90")
    A(f"v_mov_b32 {v(vt[0])}, s90")
    A(f"v_mov_b32 {v(vt[1])}, {4*word}")
    A("s_mov_b64 s[94:95], exec")
    A("s_mov_b64 exec, 1")
    A(f"global_atomic_umax {v(vt[1])}, {v(vt[0])}, s[92:93] sc1")
    A("s_mov_b64 exec, s[94:95]")
    A.label(lab)
```

```python
from common import *
def emit_touch(A, sid, full=False):
    A("s_load_dwordx16 s[8:23], s[0:1], 0")
    A("s_load_dwordx16 s[24:39], s[0:1], 64")
    A("s_load_dwordx2 s[40:41], s[0:1], 128")
    A("v_mov_b32 v3, 0")
    A("s_waitcnt lgkmcnt(0)")
    k = 4
    for i in range(15):
        A(f"global_load_dword v{k}, v3, s[{8+2*i}:{9+2*i}]"); k += 1
    for pg in range(7):
        A(f"v_mov_b32 v3, {pg * 0x200000}")
        A(f"global_load_dword v{k}, v3, s[40:41]"); k += 1
    A("s_waitcnt vmcnt(0)")
    A("s_endpgm")
    return k + 1
```

```python
import sys
from build import *
import common
import g1, ln, cs, sk, g2, touch
def empty(A, sid):
    A("s_endpgm"); return 8
L0 = ("l0_kernel", [("ln", 64, ln.emit_ln), ("cs", 56, cs.emit_cs)], 81920)
L1 = ("l1_kernel", [("g1", 224, g1.emit_g1), ("s", 224, sk.emit_s)], 81920)
L2 = ("l2_kernel", [("g2", 224, g2.emit_g2)], 81920)
E = lambda n: (f"e{n}_kernel", [("e", 8, empty)], 0)
T = sk.table_text()
TCH = ("t_kernel", [("t", 64, touch.emit_touch)], 0)
open("v_touch.s", "w").write(build_file([TCH, L0, L1, L2], tables=T))
open("v_touch2.s", "w").write(build_file([TCH, TCH, L0, L1, L2], tables=T))
open("v_base.s", "w").write(build_file([L0, L1, L2], tables=T))
```

```python
import re

def v(n, c=1):
    return f"v{n}" if c == 1 else f"v[{n}:{n+c-1}]"
def s(n, c=1):
    return f"s{n}" if c == 1 else f"s[{n}:{n+c-1}]"
def a(n, c=1):
    return f"a{n}" if c == 1 else f"a[{n}:{n+c-1}]"

TRANS = ("v_exp_f32", "v_log_f32", "v_rcp_f32", "v_rsq_f32", "v_sqrt_f32", "v_sin_f32", "v_cos_f32", "v_rcp_iflag_f32")
RMW = ("v_fmac_f32", "v_dot2c_f32_bf16", "v_pk_fmac_f16", "v_dot2c_f32_f16", "v_mac_f32")
REG_RE = re.compile(r"^(-|\|)?(?:abs\(|neg\()?([vsa])(?:(\d+)|\[(\d+):(\d+)\])\)?\|?$")

def parse_reg(tok):
    tok = tok.strip()
    if tok in ("vcc", "exec"):
        return [("s", tok + "_lo"), ("s", tok + "_hi")]
    if tok in ("vcc_lo", "vcc_hi", "exec_lo", "exec_hi", "m0", "scc"):
        return [("s", tok)]
    m = REG_RE.match(tok)
    if not m: return []
    f = m.group(2)
    if m.group(3) is not None:
        lo = hi = int(m.group(3))
    else:
        lo, hi = int(m.group(4)), int(m.group(5))
    f2 = "v" if f in ("v", "a") else "s"
    if f == "a": return [("v", 1000 + i) for i in range(lo, hi + 1)]
    return [(f2, i) for i in range(lo, hi + 1)]

class Ins:
    __slots__ = ("text", "op", "kind", "wr", "rd", "label", "target", "nop", "passes", "cwr", "srcc", "flags")
    def __init__(self, text):
        self.text = text
        self.label = None; self.target = None; self.nop = 0
        self.wr = set(); self.rd = set(); self.kind = None; self.passes = 0; self.srcc = set(); self.flags = ""
        t = text.split(";")[0].strip()
        if not t:
            self.op = None; self.kind = "none"; return
        if t.endswith(":"):
            self.label = t[:-1]; self.op = None; self.kind = "label"; return
        if t.startswith("."):
            self.op = None; self.kind = "none"; return
        parts = t.split(None, 1)
        op = parts[0]; self.op = op
        rest = parts[1] if len(parts) > 1 else ""
        ops = []; depth = 0; cur = ""
        for ch in rest:
            if ch == "[": depth += 1
            if ch == "]": depth -= 1
            if ch == "," and depth == 0:
                ops.append(cur.strip()); cur = ""
            else: cur += ch
        if cur.strip(): ops.append(cur.strip())
        mods = ""
        if ops:
            last = ops[-1].split()
            if len(last) > 1:
                ops[-1] = last[0]; mods = " ".join(last[1:])
        self.flags = mods
        R = lambda k: set(parse_reg(ops[k])) if k < len(ops) else set()
        allr = lambda lo: set().union(*[R(k) for k in range(lo, len(ops))]) if len(ops) > lo else set()
        base = re.sub(r"_(e32|e64|dpp|sdwa)$", "", op)
        if op == "s_nop":
            self.kind = "nop"; self.nop = int(ops[0], 0) + 1
        elif op.startswith("v_mfma"):
            self.kind = "mfma"
            self.wr = R(0); self.rd = R(1) | R(2) | R(3); self.srcc = R(3)
            self.passes = 8 if "32x32x16" in op else 4 if "16x16x32" in op else 16
        elif op.startswith("v_"):
            self.kind = "trans" if base in TRANS else "valu"
            if base.startswith("v_cmp"):
                self.wr = R(0); self.rd = allr(1)
                if base.startswith("v_cmpx"): self.wr |= set(parse_reg("exec"))
            elif base in ("v_readfirstlane_b32", "v_readlane_b32"):
                self.wr = R(0); self.rd = allr(1); self.kind = "readlane"
            elif base.startswith("v_permlane") and "swap" in base:
                self.wr = R(0) | R(1); self.rd = R(0) | R(1); self.kind = "permlane"
            elif base in ("v_add_co_u32", "v_sub_co_u32", "v_addc_co_u32", "v_subb_co_u32", "v_subrev_co_u32"):
                self.wr = R(0) | R(1); self.rd = allr(2)
            elif base == "v_cndmask_b32":
                self.wr = R(0); self.rd = allr(1)
                if len(ops) < 4: self.rd |= set(parse_reg("vcc"))
            else:
                self.wr = R(0); self.rd = allr(1)
                if base in RMW: self.rd |= R(0)
            if "op_sel" in mods and base.startswith("v_cvt"): pass
            if any(k in mods for k in ("quad_perm", "row_shr", "row_shl", "row_ror", "row_mirror", "row_half_mirror", "row_bcast", "wave_shr", "wave_shl", "row_newbcast")):
                self.kind = "dpp"
            if "dst_sel" in mods: self.kind = "sdwa"
        elif op.startswith("ds_"):
            self.kind = "ds"
            if op.startswith("ds_read") or op.startswith("ds_bpermute") or op.startswith("ds_swizzle") or op.startswith("ds_permute"):
                self.wr = R(0); self.rd = allr(1)
            else:
                self.rd = allr(0)
        elif op.startswith("buffer_") or op.startswith("global_"):
            self.kind = "vmem"
            islds = " lds" in (" " + mods) or op.startswith("global_load_lds")
            if op.startswith("buffer_wbl2") or op.startswith("buffer_inv"):
                pass
            elif "load" in op and not islds:
                self.wr = R(0); self.rd = allr(1)
            elif "atomic" in op and "sc0" in mods:
                self.wr = R(0); self.rd = allr(1)
            else:
                self.rd = allr(0)
                if islds: self.rd |= {("s", "m0")}
        elif op.startswith("s_load") or op.startswith("s_buffer_load") or op in ("s_memtime", "s_memrealtime"):
            self.kind = "smem"; self.wr = R(0); self.rd = allr(1)
        elif op.startswith("s_cbranch") or op == "s_branch":
            self.kind = "branch"; self.target = ops[0]
        elif op.startswith("s_"):
            self.kind = "salu"
            if op == "s_getreg_b32":
                self.wr = R(0)
            elif op.startswith("s_cmp") or op in ("s_waitcnt", "s_barrier", "s_endpgm", "s_setprio", "s_sleep", "s_setreg_b32", "s_setreg_imm32_b32", "s_bitcmp0_b32", "s_bitcmp1_b32"):
                self.rd = allr(0)
            else:
                self.wr = R(0); self.rd = allr(1)
                if "saveexec" in op: self.wr |= set(parse_reg("exec"))
        else:
            raise ValueError("unknown instr: " + text)

def need(p, c):
    n = 0
    pk, ck = p.kind, c.kind
    VALUS = ("valu", "trans", "dpp", "sdwa", "permlane", "readlane")
    pv = {r for r in p.wr if r[0] == "v"}; ps = {r for r in p.wr if r[0] == "s"}
    if pk in VALUS:
        if pv & c.rd:
            if ck == "mfma": n = max(n, 2)
            if ck == "dpp": n = max(n, 2)
            if ck == "permlane": n = max(n, 2)
            if ck == "readlane": n = max(n, 1)
            if pk == "trans" and ck in VALUS and ck != "trans": n = max(n, 1)
            if pk == "trans" and ck == "trans": n = max(n, 1)
            if pk == "trans" and ck in ("mfma",): n = max(n, 2)
            if pk == "sdwa" and ck in VALUS: n = max(n, 1)
        if ps & c.rd:
            if ck in VALUS or ck == "mfma": n = max(n, 2)
            if ck == "readlane": n = max(n, 4)
            if ck == "vmem": n = max(n, 5)
            if ck in ("salu", "smem", "branch"): n = max(n, 1)
        if ({("s", "exec_lo"), ("s", "exec_hi")} & ps):
            if ck in VALUS: n = max(n, 4)
            if ck == "mfma": n = max(n, 4)
        if ({("s", "vcc_lo"), ("s", "vcc_hi")} & ps) and c.op in ("s_cbranch_vccz", "s_cbranch_vccnz"): n = max(n, 5)
    if pk == "mfma":
        w = {2: 5, 4: 8, 8: 12, 16: 20}[p.passes]
        if ck == "mfma":
            if p.wr & (c.rd - c.srcc): n = max(n, w)
            ov = p.wr & c.srcc
            if ov and not (p.wr == c.srcc and p.passes == c.passes):
                n = max(n, {2: 4, 4: 6, 8: 10, 16: 18}[p.passes])
            if (p.wr & c.wr) and not (p.wr == c.wr): n = max(n, w)
        elif ck in VALUS or ck in ("vmem", "ds"):
            if p.wr & (c.rd | c.wr): n = max(n, w)
        if ck in VALUS and (p.srcc & c.wr):
            n = max(n, {2: 1, 4: 3, 8: 7, 16: 15}[p.passes])
    if pk == "salu" and ("s", "m0") in p.wr and ("s", "m0") in c.rd and ck in ("vmem", "ds"): n = max(n, 1)
    if pk == "salu" and ({("s", "exec_lo"), ("s", "exec_hi")} & p.wr) and ck == "dpp": n = max(n, 1)
    if pk == "vmem" and p.op and ("store" in p.op) and ("x4" in p.op or "x3" in p.op):
        data = {r for r in p.rd if r[0] == "v"}
        if data & c.wr:
            n = max(n, 2 if ck in VALUS or ck == "mfma" else 1)
    return n

class Asm:
    def __init__(self):
        self.ins = []
    def __call__(self, text):
        for line in text.split("\n"):
            if line.strip(): self.ins.append(Ins(line.strip()))
        return self
    def label(self, name): self(name + ":")
    def pad_hazards(self):
        changed = True; total = 0; it = 0
        while changed:
            changed = False; it += 1
            ins = self.ins
            labels = {x.label: i for i, x in enumerate(ins) if x.label}
            preds = [[] for _ in ins]
            for i, x in enumerate(ins):
                falls = True
                if x.kind == "branch":
                    if x.target in labels: preds[labels[x.target]].append(i)
                    if x.op == "s_branch": falls = False
                if x.op == "s_endpgm": falls = False
                if falls and i + 1 < len(ins): preds[i + 1].append(i)
            out = []; cool = 0
            for i, c in enumerate(ins):
                if c.kind in ("none", "label", "nop", None):
                    out.append(c); continue
                if cool > 0:
                    cool -= 1; out.append(c); continue
                worst = 0
                stack = [(p, 0) for p in preds[i]]
                seen = {}
                while stack:
                    j, d = stack.pop()
                    if d >= 20: continue
                    if seen.get(j, 99) <= d: continue
                    seen[j] = d
                    p = ins[j]
                    if p.kind in ("none", "label"):
                        w = 0
                    elif p.kind == "nop":
                        w = p.nop
                    else:
                        nn = need(p, c)
                        if nn > d: worst = max(worst, nn - d)
                        w = 1
                    for q in preds[j]: stack.append((q, d + w))
                if worst > 0:
                    k = worst
                    while k > 0:
                        m = min(k, 16); out.append(Ins(f"s_nop {m-1}")); k -= m
                    total += worst; changed = True; cool = 24
                out.append(c)
            self.ins = out
            if it > 2000: raise RuntimeError("hazard loop")
        return total
    def text(self):
        o = []
        for x in self.ins:
            if x.kind == "label": o.append(x.text)
            else: o.append("    " + x.text)
        return "\n".join(o) + "\n"

class Regs:
    def __init__(self, start=0, limit=256): self.n = start; self.limit = limit; self.hi = start
    def alloc(self, c=1, align=None):
        al = align or (2 if c >= 2 else 1)
        self.n = (self.n + al - 1) // al * al
        r = self.n; self.n += c
        self.hi = max(self.hi, self.n)
        assert self.n <= self.limit, "out of registers"
        return r
    def mark(self): return self.n
    def release(self, m): self.n = m
```

```python
from common import *
import os
OPT = os.environ.get('AOPT', '')

def emit_aux(A, sid, flags=True):
    sX, sWS, sW, sB1 = 8, 12, 24, 28
    s_wv, s_t0, s_t1, s_msk, s_tile = 16, 17, 18, 19, 22
    sDB = 32
    PITCH = 912
    LCS = 32768
    stamp(A, 0)
    A("s_setprio 3")
    A(f"s_load_dwordx2 {s(sX,2)}, s[0:1], {KA['x']}")
    A(f"s_load_dwordx2 {s(sWS,2)}, s[0:1], {KA['ws']}")
    A(f"s_load_dwordx2 {s(sDB,2)}, s[0:1], {KA['dbg']}")
    R = Regs(3)
    lane = R.alloc(); t0, t1, t2, t3 = [R.alloc() for _ in range(4)]
    vrow = R.alloc(); vb = R.alloc(); one = R.alloc(); vold = R.alloc()
    raw = R.alloc(28, 4)
    X = R.alloc(56, 2)
    acc = R.alloc(8, 4)
    mp = R.alloc(2, 2)
    A(f"v_lshrrev_b32 {v(t0)}, 6, v0")
    A(f"v_and_b32 {v(lane)}, 63, v0")
    A(f"v_readfirstlane_b32 {s(s_wv)}, {v(t0)}")
    A(f"v_lshrrev_b32 {v(vrow)}, 3, v0")
    A(f"v_and_b32 {v(t1)}, 7, v0")
    A(f"v_mul_u32_u24 {v(t2)}, 896, {v(vrow)}")
    A(f"v_lshl_add_u32 {v(t2)}, {v(t1)}, 4, {v(t2)}")
    A(f"s_mul_i32 {s(s_t0)}, {s(sid)}, {32*896}")
    A(f"s_mov_b32 {s(s_msk)}, 0xffff0000")
    A("s_waitcnt lgkmcnt(0)")
    srd(A, sX, X_BYTES); srd(A, sWS, WS_USED)
    for i in range(7):
        A(f"buffer_load_dwordx4 {v(raw+4*i,4)}, {v(t2)}, {s(sX,4)}, {s(s_t0)} offen offset:{128*i}")
    if flags:
        lc, lc2 = newlabel("clr"), newlabel("clr")
        A(f"s_cmp_lg_u32 {s(s_wv)}, 0")
        A(f"s_cbranch_scc1 {lc}")
        A(f"v_mov_b32 {v(t0)}, 0")
        A(f"s_and_b32 {s(s_t1)}, {s(sid)}, 3")
        A(f"s_cmp_lg_u32 {s(s_t1)}, 0")
        A(f"s_cbranch_scc1 {lc2}")
        A(f"s_lshr_b32 {s(s_t0)}, {s(sid)}, 2")
        A(f"s_lshl_b32 {s(s_t0)}, {s(s_t0)}, 7")
        A(f"s_add_u32 {s(s_t0)}, {s(s_t0)}, {FL_OFF}")
        A("s_mov_b64 exec, 1")
        A(f"buffer_store_dword {v(t0)}, {v(t0)}, {s(sWS,4)}, {s(s_t0)} offen sc1")
        A("s_mov_b64 exec, -1")
        A.label(lc2)
        A(f"s_cmp_ge_u32 {s(sid)}, 7")
        A(f"s_cbranch_scc1 {lc}")
        A(f"s_lshl_b32 {s(s_t1)}, {s(sid)}, 7")
        A(f"s_add_u32 {s(s_t1)}, {s(s_t1)}, {FL_OFF + 2048}")
        A("s_mov_b64 exec, 1")
        A(f"buffer_store_dword {v(t0)}, {v(t0)}, {s(sWS,4)}, {s(s_t1)} offen sc1")
        A("s_mov_b64 exec, -1")
        A.label(lc)
    vL = R.alloc()
    A(f"v_mul_u32_u24 {v(vL)}, {PITCH}, {v(vrow)}")
    A(f"v_lshl_add_u32 {v(vL)}, {v(t1)}, 4, {v(vL)}")
    A(f"v_mov_b32 {v(one)}, 1")
    for i in range(7):
        A(f"s_waitcnt vmcnt({6-i})")
        for w in range(4):
            A(f"v_lshlrev_b32 {v(X+8*i+2*w)}, 16, {v(raw+4*i+w)}")
            A(f"v_and_b32 {v(X+8*i+2*w+1)}, 0xffff0000, {v(raw+4*i+w)}")
    stamp(A, 1)
    for p in range(4): A(f"v_pk_add_f32 {v(acc+2*p,2)}, {v(X+2*p,2)}, {v(X+8+2*p,2)}")
    for i in range(2, 7):
        for p in range(4): A(f"v_pk_add_f32 {v(acc+2*p,2)}, {v(acc+2*p,2)}, {v(X+8*i+2*p,2)}")
    def fold(dst):
        A(f"v_pk_add_f32 {v(acc,2)}, {v(acc,2)}, {v(acc+2,2)}")
        A(f"v_pk_add_f32 {v(acc+4,2)}, {v(acc+4,2)}, {v(acc+6,2)}")
        A(f"v_pk_add_f32 {v(acc,2)}, {v(acc,2)}, {v(acc+4,2)}")
        A(f"v_add_f32 {v(dst)}, {v(acc)}, {v(acc+1)}")
        A(f"v_add_f32 {v(dst)}, {v(dst)}, {v(dst)} quad_perm:[1,0,3,2] row_mask:0xf bank_mask:0xf")
        A(f"v_add_f32 {v(dst)}, {v(dst)}, {v(dst)} quad_perm:[2,3,0,1] row_mask:0xf bank_mask:0xf")
        A(f"v_add_f32 {v(dst)}, {v(dst)}, {v(dst)} row_half_mirror row_mask:0xf bank_mask:0xf")
    fold(t0)
    inv = f32bits(1.0/448)
    A(f"v_mul_f32 {v(mp)}, {inv}, {v(t0)}")
    D = raw
    for i in range(7):
        for p in range(4): A(f"v_pk_add_f32 {v(D+2*p,2)}, {v(X+8*i+2*p,2)}, {v(mp,2)} op_sel_hi:[1,0] neg_lo:[0,1] neg_hi:[0,1]")
        for p in range(4):
            if i == 0: A(f"v_pk_mul_f32 {v(acc+2*p,2)}, {v(D+2*p,2)}, {v(D+2*p,2)}")
            else: A(f"v_pk_fma_f32 {v(acc+2*p,2)}, {v(D+2*p,2)}, {v(D+2*p,2)}, {v(acc+2*p,2)}")
    fold(t1)
    A(f"v_mul_f32 {v(t1)}, {inv}, {v(t1)}")
    A(f"v_cvt_pk_bf16_f32 {v(t2)}, {v(mp)}, {v(t1)}")
    A(f"v_lshlrev_b32 {v(mp)}, 16, {v(t2)}")
    A(f"v_and_b32 {v(t1)}, 0xffff0000, {v(t2)}")
    A(f"v_add_f32 {v(t1)}, {f32bits(1e-5)}, {v(t1)}")
    A(f"v_cvt_pk_bf16_f32 {v(t1)}, {v(t1)}, {v(t1)}")
    A(f"v_and_b32 {v(t1)}, 0xffff0000, {v(t1)}")
    A(f"v_sqrt_f32 {v(t1)}, {v(t1)}")
    A(f"v_cvt_pk_bf16_f32 {v(t1)}, {v(t1)}, {v(t1)}")
    A(f"v_and_b32 {v(t1)}, 0xffff0000, {v(t1)}")
    A(f"v_rcp_f32 {v(mp+1)}, {v(t1)}")
    aug = R.alloc(4, 4); zer = R.alloc(4, 4)
    A(f"v_xor_b32 {v(t2)}, 0x80000000, {v(mp)}")
    A(f"v_lshrrev_b32 {v(t3)}, 16, {v(t2)}")
    A(f"v_and_or_b32 {v(aug)}, {v(t2)}, {s(s_msk)}, {v(t3)}")
    A(f"v_lshrrev_b32 {v(aug+1)}, 16, {v(t1)}")
    A(f"v_mov_b32 {v(aug+2)}, 0"); A(f"v_mov_b32 {v(aug+3)}, 0")
    for i in range(4): A(f"v_mov_b32 {v(zer+i)}, 0")
    A(f"s_lshl_b32 {s(s_t0)}, {s(sid)}, 8")
    A(f"s_add_u32 {s(s_t0)}, {s(s_t0)}, {ST_OFF}")
    A(f"v_lshlrev_b32 {v(t2)}, 3, {v(vrow)}")
    A(f"v_and_b32 {v(t3)}, 7, {v(lane)}")
    A(f"v_cmp_eq_u32 vcc, 0, {v(t3)}")
    A(f"s_and_saveexec_b64 s[20:21], vcc")
    A(f"buffer_store_dwordx2 {v(mp,2)}, {v(t2)}, {s(sWS,4)}, {s(s_t0)} offen sc1")
    A(f"s_lshl_b32 {s(s_t0)}, {s(sid)}, 10")
    A(f"s_add_u32 {s(s_t0)}, {s(s_t0)}, {AUGB_OFF}")
    A(f"v_lshlrev_b32 {v(t2)}, 4, {v(vrow)}")
    A(f"buffer_store_dwordx4 {v(aug,4)}, {v(t2)}, {s(sWS,4)}, {s(s_t0)} offen sc1")
    A(f"buffer_store_dwordx4 {v(zer,4)}, {v(t2)}, {s(sWS,4)}, {s(s_t0)} offen offset:512 sc1")
    A(f"s_mov_b64 exec, s[20:21]")
    stamp(A, 2)
    rr = R.alloc(2, 2)
    A(f"v_mov_b32 {v(rr)}, {v(mp+1)}"); A(f"v_mov_b32 {v(rr+1)}, {v(mp+1)}")
    for i in range(7):
        for p in range(4): A(f"v_pk_add_f32 {v(X+8*i+2*p,2)}, {v(X+8*i+2*p,2)}, {v(mp,2)} op_sel_hi:[1,0] neg_lo:[0,1] neg_hi:[0,1]")
        for p in range(4): A(f"v_cvt_pk_bf16_f32 {v(D+p)}, {v(X+8*i+2*p)}, {v(X+8*i+2*p+1)}")
        for p in range(4):
            A(f"v_lshlrev_b32 {v(X+8*i+2*p)}, 16, {v(D+p)}")
            A(f"v_and_b32 {v(X+8*i+2*p+1)}, 0xffff0000, {v(D+p)}")
        for p in range(4): A(f"v_pk_mul_f32 {v(X+8*i+2*p,2)}, {v(X+8*i+2*p,2)}, {v(rr,2)}")
        o = D + 8 + 4*(i & 1)
        for p in range(4): A(f"v_cvt_pk_bf16_f32 {v(o+p)}, {v(X+8*i+2*p)}, {v(X+8*i+2*p+1)}")
        A(f"ds_write_b128 {v(vL)}, {v(o,4)} offset:{128*i}")
    A("s_waitcnt lgkmcnt(0) vmcnt(0)")
    A("s_barrier")
    stamp(A, 3)
    if flags:
        l3 = newlabel("aux_arr")
        A(f"s_cmp_lg_u32 {s(s_wv)}, 0")
        A(f"s_cbranch_scc1 {l3}")
        A(f"v_mov_b32 {v(t3)}, {CNT_AUX}")
        arrive_ret(A, vold, t3, one, sDB)
        A.label(l3)
    A(f"v_lshrrev_b32 {v(t0)}, 4, {v(lane)}")
    A(f"v_bfe_u32 {v(t1)}, {v(lane)}, 2, 2")
    A(f"v_lshl_add_u32 {v(t1)}, {v(t0)}, 3, {v(t1)}")
    A(f"v_mul_u32_u24 {v(t1)}, {PITCH}, {v(t1)}")
    A(f"v_and_b32 {v(t2)}, 3, {v(lane)}")
    A(f"v_lshl_add_u32 {v(t1)}, {v(t2)}, 3, {v(t1)}")
    A(f"s_lshl_b32 {s(s_t0)}, {s(s_wv)}, 5")
    A(f"v_add_u32 {v(t1)}, {s(s_t0)}, {v(t1)}")
    A(f"v_lshlrev_b32 {v(t2)}, 4, {v(lane)}")
    A(f"s_mul_i32 {s(s_t0)}, {s(sid)}, 28672")
    A(f"s_lshl_b32 {s(s_t1)}, {s(s_wv)}, 10")
    A(f"s_add_u32 {s(s_t0)}, {s(s_t0)}, {s(s_t1)}")
    A(f"s_add_u32 {s(s_t0)}, {s(s_t0)}, {XT_OFF}")
    for k in range(7):
        A(f"ds_read_b64_tr_b16 {v(X+4*k,2)}, {v(t1)} offset:{128*k}")
        A(f"ds_read_b64_tr_b16 {v(X+4*k+2,2)}, {v(t1)} offset:{128*k + 4*PITCH}")
    for k in range(7):
        A(f"s_waitcnt lgkmcnt({2*(6-k)})")
        A(f"buffer_store_dwordx4 {v(X+4*k,4)}, {v(t2)}, {s(sWS,4)}, {s(s_t0)} offen sc1")
        if k < 6: A(f"s_add_u32 {s(s_t0)}, {s(s_t0)}, 4096")
    if flags:
        l4 = newlabel("aux_pub")
        A(f"s_cmp_lg_u32 {s(s_wv)}, 0")
        A(f"s_cbranch_scc1 {l4}")
        A(f"v_mov_b32 {v(t3)}, {DONE_AUX}")
        done_if_last(A, vold, 64, t3, one, sDB, s_t1, younger=7)
        A.label(l4)
        A("s_waitcnt vmcnt(0)")
        A("s_barrier")
        l2 = newlabel("xt_done")
        A(f"s_cmp_lg_u32 {s(s_wv)}, 0")
        A(f"s_cbranch_scc1 {l2}")
        A(f"v_mov_b32 {v(t2)}, {CNT_XT}")
        arrive_ret(A, vold, t2, one, sDB)
        A(f"v_mov_b32 {v(t2)}, {DONE_XT}")
        done_if_last(A, vold, 64, t2, one, sDB, s_t0)
        A.label(l2)
    stamp(A, 4)
    if DIAG:
        A("s_waitcnt vmcnt(0)")
        stamp(A, 5)
    dump_stamps(A, 6, 2, sWS, t0, t1)
    A("s_endpgm")
    return R.hi
```

```python
from asmdsl import *
NAME = "parallel_sum__ssm_conv_s4__dense_activation_gelu__prompt"
KA = dict(x=0, Are=8, Aim=16, Bre=24, Bim=32, Cre=40, Cim=48, ldt=56, Dsk=64, bx=72, w1=80, b1=88, w2=96, b2=104, out=112, dbg=120, ws=128)
H_OFF = 0
XT_OFF = 0x700000
KT_OFF = 0x8C0000
Y_OFF = 0xA80000
ST_OFF = 0xC40000
AUGA_OFF = 0xC44000
AUGB_OFF = 0xC52000
FL_OFF = 0xC62000
WS_USED = 0xC63000
X_BYTES = 2048 * 448 * 2
W_BYTES = 448 * 1792 * 2
P_BYTES = 448 * 256 * 2

def srd(A, sreg, nbytes):
    A(f"s_mov_b32 {s(sreg+2)}, {nbytes}")
    A(f"s_mov_b32 {s(sreg+3)}, 0x20000")

def f32bits(x):
    import struct
    return "0x%08x" % struct.unpack("<I", struct.pack("<f", x))[0]

def kernel_desc(name, vgpr, sgpr=96):
    acc = (vgpr + 3) // 4 * 4
    return f""".p2align 6
.amdhsa_kernel {name}
  .amdhsa_next_free_vgpr {vgpr}
  .amdhsa_next_free_sgpr {sgpr}
  .amdhsa_accum_offset {acc}
  .amdhsa_group_segment_fixed_size 0
  .amdhsa_kernarg_size 136
  .amdhsa_user_sgpr_count 2
  .amdhsa_user_sgpr_kernarg_segment_ptr 1
  .amdhsa_system_sgpr_workgroup_id_x 1
  .amdhsa_float_denorm_mode_32 3
.end_amdhsa_kernel
"""

DIAG = False
DIAG_OFF = 0x1000000
DIAG_IDX = [0]
_SB = 60
def stamp(A, i):
    if DIAG: A(f"s_memrealtime {s(_SB + 2*i, 2)}")
def cstamp(A, i):
    if DIAG: A(f"s_memtime {s(_SB + 2*i, 2)}")
def dump_stamps(A, n, slot_sreg, sWS, vt0, vt1):
    if not DIAG: return
    A("s_waitcnt lgkmcnt(0)")
    A(f"s_lshl_b32 s58, {s(slot_sreg)}, 6")
    A(f"s_add_u32 s58, s58, {DIAG_OFF + DIAG_IDX[0] * 0x10000}")
    A(f"s_mov_b32 {s(sWS+2)}, 0x2000000")
    A("s_getreg_b32 s56, hwreg(HW_REG_HW_ID)")
    A("s_getreg_b32 s57, hwreg(HW_REG_XCC_ID)")
    for i, sr in ((8, 56), (9, 57)):
        A(f"v_mov_b32 {v(vt0)}, {s(sr)}")
        A(f"v_mov_b32 {v(vt1)}, {4*i}")
        A(f"buffer_store_dword {v(vt0)}, {v(vt1)}, {s(sWS,4)}, s58 offen")
    for i in range(n):
        A(f"v_mov_b32 {v(vt0)}, {s(_SB + 2*i)}")
        A(f"v_mov_b32 {v(vt1)}, {4*i}")
        A(f"buffer_store_dword {v(vt0)}, {v(vt1)}, {s(sWS,4)}, s58 offen")

HD = False
HD_N = [3]
HD_CNT = [0]
def hd_stamp(A, word, neg=False, vt=(250, 251)):
    if not HD: return
    li = DIAG_IDX[0]
    HD_CNT[0] += 1
    lab = f"L_hd_{HD_CNT[0]}"
    A("s_and_b32 s90, s2, 0x1f")
    A("s_cmp_gt_u32 s90, 1")
    A(f"s_cbranch_scc1 {lab}")
    A("v_readfirstlane_b32 s90, v0")
    A("s_cmp_ge_u32 s90, 64")
    A(f"s_cbranch_scc1 {lab}")
    A("s_memrealtime s[90:91]")
    A(f"s_load_dwordx2 s[92:93], s[0:1], {KA['dbg']}")
    A("s_waitcnt lgkmcnt(0)")
    A(f"s_add_u32 s92, s92, {512*(HD_N[0] - 1 - li)}")
    A("s_addc_u32 s93, s93, 0")
    if neg: A("s_not_b32 s90, s90")
    A(f"v_mov_b32 {v(vt[0])}, s90")
    A(f"v_mov_b32 {v(vt[1])}, {4*word}")
    A("s_mov_b64 s[94:95], exec")
    A("s_mov_b64 exec, 1")
    A(f"global_atomic_umax {v(vt[1])}, {v(vt[0])}, s[92:93] sc1")
    A("s_mov_b64 exec, s[94:95]")
    A.label(lab)


CNT_AUX, CNT_XT = 0, 4
DONE_AUX, DONE_XT, DONE_Y = 128, 132, 136
_lab = [0]
def newlabel(p):
    _lab[0] += 1
    return f"L_{p}_{_lab[0]}"
def poll_issue(A, vdst, vaddr, sbase, mask=1):
    A(f"s_mov_b64 exec, {mask}")
    A(f"global_load_dword {v(vdst)}, {v(vaddr)}, {s(sbase,2)} sc1")
    A("s_mov_b64 exec, -1")
def poll_test(A, vdst, target, mask=1):
    A(f"s_mov_b64 exec, {mask}")
    A(f"v_cmp_le_u32 vcc, {target}, {v(vdst)}")
    A("s_cmp_eq_u64 vcc, exec")
    A("s_mov_b64 exec, -1")
def poll_spin(A, vdst, vaddr, sbase, target, sleep=8, mask=1):
    l0, l1 = newlabel("spin"), newlabel("spun")
    A("s_mov_b32 s88, 0x40000")
    A.label(l0)
    poll_issue(A, vdst, vaddr, sbase, mask)
    A("s_waitcnt vmcnt(0)")
    poll_test(A, vdst, target, mask)
    A(f"s_cbranch_scc1 {l1}")
    A(f"s_sleep {sleep}")
    A("s_sub_u32 s88, s88, 1")
    A("s_cmp_lg_u32 s88, 0")
    A(f"s_cbranch_scc1 {l0}")
    A.label(l1)
def arrive(A, vaddr, vone, sbase):
    A("s_mov_b64 exec, 1")
    A(f"global_atomic_add {v(vaddr)}, {v(vone)}, {s(sbase,2)} sc1")
    A("s_mov_b64 exec, -1")

def arrive_ret(A, vold, vaddr, vone, sbase):
    A("s_mov_b64 exec, 1")
    A(f"global_atomic_add {v(vold)}, {v(vaddr)}, {v(vone)}, {s(sbase,2)} sc0 sc1")
    A("s_mov_b64 exec, -1")
def done_if_last(A, vold, n, vaddr, vone, sbase, stmp, younger=0):
    l = newlabel("notlast")
    A(f"s_waitcnt vmcnt({younger})")
    A(f"v_readfirstlane_b32 {s(stmp)}, {v(vold)}")
    A(f"s_cmp_lg_u32 {s(stmp)}, {n-1}")
    A(f"s_cbranch_scc1 {l}")
    A("s_mov_b64 exec, 1")
    A(f"global_store_dword {v(vaddr)}, {v(vone)}, {s(sbase,2)} sc1")
    A("s_mov_b64 exec, -1")
    A.label(l)
```

```python
from common import *
from g1 import VmQ
import math, os
OPT = os.environ.get('MOPT', '')
PW = 17408

def emit_m(A, sid, flags=True, part="both"):
    sX, sW, sWS = 8, 12, 16
    s_rb, s_fb, s_wv, s_wf, s_wt = 24, 25, 26, 27, 28
    s_xb, s_wb, s_lx, s_t0, s_t1, s_t2, s_lw, s_ho = 29, 30, 31, 32, 33, 34, 35, 36
    s_ok, s_r64, s_cb = 37, 38, 39
    sW2, sO, sD, sB, sDB = 40, 44, 48, 52, 56
    s_hb, s_w2b, s_lb, s_ob0, s_ob1 = 20, 21, 22, 23, 59
    Q = VmQ(A)
    stamp(A, 0)
    MP = int(os.environ.get('MPRIO', '2'))
    if MP: A(f"s_setprio {MP}")
    A(f"s_load_dwordx2 {s(sX,2)}, s[0:1], {KA['x']}")
    A(f"s_load_dwordx2 {s(sW,2)}, s[0:1], {KA['w1']}")
    A(f"s_load_dwordx2 {s(sWS,2)}, s[0:1], {KA['ws']}")
    A(f"s_load_dwordx2 {s(sW2,2)}, s[0:1], {KA['w2']}")
    A(f"s_load_dwordx2 {s(sO,2)}, s[0:1], {KA['out']}")
    A(f"s_load_dwordx2 {s(sD,2)}, s[0:1], {KA['Dsk']}")
    A(f"s_load_dwordx2 {s(sB,2)}, s[0:1], {KA['b2']}")
    A(f"s_load_dwordx2 {s(sDB,2)}, s[0:1], {KA['dbg']}")
    sB1 = 60 if not DIAG else 80
    A(f"s_load_dwordx2 {s(sB1,2)}, s[0:1], {KA['b1']}")
    R = Regs(3)
    lane = R.alloc(); tmp = [R.alloc() for _ in range(6)]
    t0, t1, t2, t3, t4, t5 = tmp
    vH, vW2g, vPa, vPv, vone = [R.alloc() for _ in range(5)]
    vA2 = [R.alloc(), R.alloc()]
    mk = R.mark()
    vXe, vXo, vW = R.alloc(), R.alloc(), R.alloc()
    vA = [R.alloc(), R.alloc()]
    vB = [[R.alloc() for _ in range(4)] for _ in range(2)]
    augA = [R.alloc(4, 4), R.alloc(4, 4)]; augB = [R.alloc(4, 4), R.alloc(4, 4)]
    P = [R.alloc(2, 2), R.alloc(2, 2)]
    cacc = R.alloc(4, 4); sel = R.alloc(4, 4); vb1 = [R.alloc(), R.alloc()]
    acc = [[R.alloc(16, 4) for _ in range(2)] for _ in range(2)]
    fA = [[R.alloc(4, 4) for _ in range(2)] for _ in range(2)]
    fB = [[R.alloc(4, 4) for _ in range(2)] for _ in range(2)]
    ep = R.alloc(32, 4)
    A(f"v_lshrrev_b32 {v(t0)}, 6, v0")
    A(f"v_and_b32 {v(lane)}, 63, v0")
    A(f"v_readfirstlane_b32 {s(s_wv)}, {v(t0)}")
    A(f"s_and_b32 {s(s_t0)}, {s(sid)}, 7")
    A(f"s_lshr_b32 {s(s_t1)}, {s(sid)}, 3")
    A(f"s_and_b32 {s(s_rb)}, {s(s_t0)}, 3")
    A(f"s_lshl_b32 {s(s_rb)}, {s(s_rb)}, 2")
    A(f"s_and_b32 {s(s_t2)}, {s(s_t1)}, 3")
    A(f"s_add_u32 {s(s_rb)}, {s(s_rb)}, {s(s_t2)}")
    A(f"s_lshr_b32 {s(s_t0)}, {s(s_t0)}, 2")
    A(f"s_lshr_b32 {s(s_cb)}, {s(s_t1)}, 2")
    A(f"s_mul_i32 {s(s_fb)}, {s(s_t0)}, 7")
    A(f"s_add_u32 {s(s_fb)}, {s(s_fb)}, {s(s_cb)}")
    A(f"s_lshl_b32 {s(s_r64)}, {s(s_rb)}, 1")
    A(f"s_add_u32 {s(s_r64)}, {s(s_r64)}, {s(s_t0)}")
    A(f"s_lshr_b32 {s(s_wf)}, {s(s_wv)}, 1")
    A(f"s_and_b32 {s(s_wt)}, {s(s_wv)}, 1")
    A(f"s_mul_i32 {s(s_xb)}, {s(s_rb)}, {128*896}")
    A(f"s_mul_i32 {s(s_t0)}, {s(s_wv)}, {4*7168}")
    A(f"s_add_u32 {s(s_xb)}, {s(s_xb)}, {s(s_t0)}")
    A(f"s_lshl_b32 {s(s_wb)}, {s(s_fb)}, 8")
    A(f"s_mul_i32 {s(s_t0)}, {s(s_wv)}, {2*14336}")
    A(f"s_add_u32 {s(s_wb)}, {s(s_wb)}, {s(s_t0)}")
    A(f"s_lshl_b32 {s(s_lx)}, {s(s_wv)}, 12")
    A(f"s_lshl_b32 {s(s_lw)}, {s(s_wv)}, 11")
    A(f"v_lshrrev_b32 {v(t0)}, 3, {v(lane)}")
    A(f"v_mul_u32_u24 {v(t0)}, 896, {v(t0)}")
    A(f"v_and_b32 {v(t1)}, 7, {v(lane)}")
    A(f"v_lshrrev_b32 {v(t2)}, 4, {v(lane)}")
    A(f"v_xor_b32 {v(t3)}, {v(t1)}, {v(t2)}")
    A(f"v_lshl_add_u32 {v(vXe)}, {v(t3)}, 4, {v(t0)}")
    A(f"v_xor_b32 {v(t3)}, 4, {v(t3)}")
    A(f"v_lshl_add_u32 {v(vXo)}, {v(t3)}, 4, {v(t0)}")
    A(f"v_and_b32 {v(t3)}, 1, {v(t2)}")
    A(f"v_lshlrev_b32 {v(t3)}, 2, {v(t3)}")
    A(f"v_xor_b32 {v(t3)}, {v(t3)}, {v(t1)}")
    A(f"v_lshl_add_u32 {v(vW2g)}, {v(t3)}, 4, {v(t0)}")
    A(f"v_mul_u32_u24 {v(t0)}, 3584, {v(t2)}")
    A(f"v_and_b32 {v(t1)}, 15, {v(lane)}")
    A(f"v_lshlrev_b32 {v(t3)}, 2, {v(t2)}")
    A(f"v_xor_b32 {v(t1)}, {v(t1)}, {v(t3)}")
    A(f"v_lshl_add_u32 {v(vW)}, {v(t1)}, 4, {v(t0)}")
    A("s_waitcnt lgkmcnt(0)")
    srd(A, sX, X_BYTES); srd(A, sW, W_BYTES); srd(A, sWS, WS_USED)
    XS = lambda c: (c % 3) * 16384
    WSL = lambda j: 49152 + (j % 4) * 8192
    def dmaX(c):
        L = []
        for ii in range(4):
            def f(ii=ii):
                A(f"s_add_u32 m0, {s(s_lx)}, {XS(c) + ii*1024}")
                A(f"s_add_u32 {s(s_t0)}, {s(s_xb)}, {ii*7168 + c*128}")
                A(f"buffer_load_dwordx4 {v(vXe if ii % 2 == 0 else vXo)}, {s(sX,4)}, {s(s_t0)} offen lds")
                Q.issue(("X", c))
            L.append(f)
        return L
    def dmaW(j):
        L = []
        for ii in range(2):
            def f(ii=ii):
                A(f"s_add_u32 m0, {s(s_lw)}, {WSL(j) + ii*1024}")
                A(f"s_add_u32 {s(s_t0)}, {s(s_wb)}, {ii*14336 + j*114688}")
                A(f"buffer_load_dwordx4 {v(vW)}, {s(sW,4)}, {s(s_t0)} offen lds")
                Q.issue(("W", j))
            L.append(f)
        return L
    for f in dmaX(0) + dmaW(0) + dmaW(1) + dmaX(1) + dmaW(2) + dmaW(3) + dmaX(2): f()
    srd(A, sW2, W_BYTES); srd(A, sO, X_BYTES); srd(A, sD, 896); srd(A, sB, 896); srd(A, sB1, 3584)
    A(f"v_and_b32 {v(t0)}, 31, {v(lane)}")
    A(f"v_lshlrev_b32 {v(t0)}, 1, {v(t0)}")
    for u in range(2):
        A(f"s_xor_b32 {s(s_t0)}, {s(s_wt)}, {u}")
        A(f"s_lshl_b32 {s(s_t1)}, {s(s_wf)}, 1")
        A(f"s_add_u32 {s(s_t0)}, {s(s_t0)}, {s(s_t1)}")
        A(f"s_lshl_b32 {s(s_t0)}, {s(s_t0)}, 6")
        A(f"s_lshl_b32 {s(s_t1)}, {s(s_fb)}, 8")
        A(f"s_add_u32 {s(s_t0)}, {s(s_t0)}, {s(s_t1)}")
        A(f"buffer_load_ushort {v(vb1[u])}, {v(t0)}, {s(sB1,4)}, {s(s_t0)} offen")
        Q.issue("b1")
    A(f"v_lshrrev_b32 {v(t0)}, 5, {v(lane)}")
    A(f"v_bfe_u32 {v(t1)}, {v(lane)}, 2, 2")
    A(f"v_lshl_add_u32 {v(t2)}, {v(t0)}, 3, {v(t1)}")
    A(f"v_lshlrev_b32 {v(t2)}, 8, {v(t2)}")
    A(f"v_bfe_u32 {v(t3)}, {v(lane)}, 4, 1")
    A(f"v_lshlrev_b32 {v(t3)}, 1, {v(t3)}")
    A(f"v_bfe_u32 {v(t4)}, {v(lane)}, 1, 1")
    A(f"v_add_u32 {v(t3)}, {v(t3)}, {v(t4)}")
    A(f"v_lshlrev_b32 {v(t5)}, 4, {v(t3)}")
    A(f"v_and_b32 {v(t4)}, 1, {v(lane)}")
    A(f"v_lshl_add_u32 {v(t5)}, {v(t4)}, 3, {v(t5)}")
    A(f"v_add_u32 {v(t2)}, {v(t2)}, {v(t5)}")
    for u in range(2):
        A(f"s_xor_b32 {s(s_t0)}, {s(s_wt)}, {u}")
        A(f"s_lshl_b32 {s(s_t1)}, {s(s_wf)}, 1")
        A(f"s_add_u32 {s(s_t0)}, {s(s_t0)}, {s(s_t1)}")
        A(f"v_xor_b32 {v(t3)}, {s(s_t0)}, {v(t1)}")
        A(f"v_lshl_add_u32 {v(vA[u])}, {v(t3)}, 6, {v(t2)}")
        A(f"v_add_u32 {v(vA[u])}, 49152, {v(vA[u])}")
    A(f"s_mul_i32 {s(s_lb)}, {s(s_wv)}, {PW}")
    A(f"v_lshl_add_u32 {v(t2)}, {v(t0)}, 2, {v(t1)}")
    A(f"v_lshl_add_u32 {v(t2)}, {v(t2)}, 7, {v(t5)}")
    A(f"v_add_u32 {v(t2)}, {s(s_lb)}, {v(t2)}")
    A(f"v_lshrrev_b32 {v(t3)}, 1, {v(t1)}")
    A(f"v_lshl_add_u32 {v(vA2[0])}, {v(t3)}, 6, {v(t2)}")
    A(f"v_xor_b32 {v(t3)}, 1, {v(t3)}")
    A(f"v_lshl_add_u32 {v(vA2[1])}, {v(t3)}, 6, {v(t2)}")
    A(f"v_and_b32 {v(t1)}, 31, {v(lane)}")
    A(f"v_bfe_u32 {v(t2)}, {v(lane)}, 1, 3")
    A(f"v_xor_b32 {v(t2)}, {v(t2)}, {v(t0)}")
    for u in range(2):
        A(f"s_xor_b32 {s(s_t0)}, {s(s_wf)}, {u}")
        A(f"s_lshl_b32 {s(s_t1)}, {s(s_wt)}, 1")
        A(f"s_add_u32 {s(s_t0)}, {s(s_t0)}, {s(s_t1)}")
        A(f"s_lshl_b32 {s(s_t0)}, {s(s_t0)}, 12")
        A(f"v_lshl_add_u32 {v(t3)}, {v(t1)}, 7, {s(s_t0)}")
        for ks in range(4):
            A(f"v_xor_b32 {v(t4)}, {2*ks}, {v(t2)}")
            A(f"v_lshl_add_u32 {v(vB[u][ks])}, {v(t4)}, 4, {v(t3)}")
    A(f"v_lshlrev_b32 {v(vH)}, 4, {v(lane)}")
    A(f"v_mov_b32 {v(vone)}, 1")
    A(f"v_and_b32 {v(t1)}, 15, {v(lane)}")
    A(f"v_bfe_u32 {v(t2)}, {v(lane)}, 4, 1")
    A(f"v_cmp_eq_u32 vcc, {v(t1)}, {v(t2)}")
    A(f"v_mov_b32 {v(t3)}, 0x3f803f80")
    A(f"v_cndmask_b32 {v(sel)}, 0, {v(t3)}, vcc")
    for i in range(1, 4): A(f"v_mov_b32 {v(sel+i)}, {v(sel)}")
    A(f"v_mov_b32 {v(vPa)}, {DONE_AUX}")
    A(f"s_mul_i32 {s(s_hb)}, {s(s_r64)}, {2*112*1024}")
    A(f"s_mul_i32 {s(s_t0)}, {s(s_wv)}, {28*1024}")
    A(f"s_add_u32 {s(s_hb)}, {s(s_hb)}, {s(s_t0)}")
    A(f"s_mul_i32 {s(s_w2b)}, {s(s_wv)}, {28*16*896}")
    A(f"s_lshl_b32 {s(s_t0)}, {s(s_cb)}, 7")
    A(f"s_add_u32 {s(s_w2b)}, {s(s_w2b)}, {s(s_t0)}")
    A(f"s_mul_i32 {s(s_ob0)}, {s(s_r64)}, {64*896}")
    A(f"s_add_u32 {s(s_ob0)}, {s(s_ob0)}, {s(s_t0)}")
    A(f"s_add_u32 {s(s_ob1)}, {s(s_ob0)}, {32*896}")
    def read_list(step, buf):
        c, ks = divmod(step, 4); j = step >> 1
        wa = WSL(j) + (ks & 1) * 4096
        L = []
        for u in range(2):
            for h in range(2):
                L.append(f"ds_read_b64_tr_b16 {v(fA[buf][u] + 2*h, 2)}, {v(vA[u])} offset:{wa - 49152 + h*1024}")
            L.append(f"ds_read_b128 {v(fB[buf][u], 4)}, {v(vB[u][ks])} offset:{XS(c)}")
        return L
    order = [(0, 0), (0, 1), (1, 0), (1, 1)]
    def mfma(buf, k, first):
        uf, ut = order[k]
        cin = "0" if first else v(acc[uf][ut], 16)
        A(f"v_mfma_f32_32x32x16_bf16 {v(acc[uf][ut],16)}, {v(fA[buf][uf],4)}, {v(fB[buf][ut],4)}, {cin}")
    def aug_loads(tag):
        A(f"v_and_b32 {v(t1)}, 31, {v(lane)}")
        A(f"v_lshlrev_b32 {v(t1)}, 3, {v(t1)}")
        for u in range(2):
            A(f"s_xor_b32 {s(s_t0)}, {s(s_wf)}, {u}")
            A(f"s_lshl_b32 {s(s_t1)}, {s(s_wt)}, 1")
            A(f"s_add_u32 {s(s_t0)}, {s(s_t0)}, {s(s_t1)}")
            A(f"s_lshl_b32 {s(s_t1)}, {s(s_rb)}, 2")
            A(f"s_add_u32 {s(s_t0)}, {s(s_t0)}, {s(s_t1)}")
            A(f"s_lshl_b32 {s(s_t1)}, {s(s_t0)}, 8")
            A(f"s_add_u32 {s(s_t1)}, {s(s_t1)}, {ST_OFF}")
            A(f"buffer_load_dwordx2 {v(P[u],2)}, {v(t1)}, {s(sWS,4)}, {s(s_t1)} offen sc1")
            A(f"s_lshl_b32 {s(s_t1)}, {s(s_t0)}, 10")
            A(f"s_add_u32 {s(s_t1)}, {s(s_t1)}, {AUGB_OFF}")
            A(f"buffer_load_dwordx4 {v(augB[u],4)}, {v(vH)}, {s(sWS,4)}, {s(s_t1)} offen sc1")
            if tag: Q.issue(tag, 2)
    NSW, DH = 8, 7
    PS, LS = int(os.environ.get('PS', '19')), int(os.environ.get('LS', '24'))
    YP, YL = 17, 23
    def dmaW2(k):
        for i in range(2):
            A(f"s_add_u32 m0, {s(s_lb)}, {(k % NSW)*2048 + i*1024}")
            A(f"s_add_u32 {s(s_t0)}, {s(s_w2b)}, {(16*k + 8*i)*896}")
            A(f"buffer_load_dwordx4 {v(vW2g)}, {s(sW2,4)}, {s(s_t0)} offen lds")
            Q.issue(("W2", k))
    Q.wait(("W", 0))
    A("s_barrier")
    stamp(A, 1)
    for x in read_list(0, 0): A(x)
    pend = []; GAP = 1
    for step in range(28):
        buf = step & 1; first = step == 0; j = step >> 1
        if 'fine' in OPT and step in (6, 14, 21, 24): stamp(A, {6: 3, 14: 4, 21: 5, 24: 6}[step])
        A("s_waitcnt lgkmcnt(0)")
        ex = []
        mfma(buf, 0, first)
        if step == 27:
            A("s_barrier")
            rl = []
        elif step & 1 == 0:
            rl = read_list(step + 1, buf ^ 1)
        else:
            jn = j + 1
            Q.wait(("W", jn))
            if jn & 1 == 0: Q.wait(("X", jn >> 1))
            A("s_barrier")
            rl = read_list(step + 1, buf ^ 1)
            if jn + 3 < 14: ex += dmaW(jn + 3)
            if jn & 1 == 0 and (jn >> 1) + 2 < 7: ex += dmaX((jn >> 1) + 2)
        if step == PS and flags and 'nopoll' not in OPT:
            def pi():
                poll_issue(A, vPv, vPa, sDB); Q.issue("poll")
            ex = ex + [pi]
        if step == LS:
            def stl():
                if flags and 'nopoll' in OPT: A(f"s_mov_b32 {s(s_ok)}, 0")
                elif flags:
                    Q.wait("poll")
                    poll_test(A, vPv, 1)
                    A(f"s_cselect_b32 {s(s_ok)}, 1, 0")
                aug_loads("st")
            ex = ex + [stl]
        pend += ex
        def gap(n=1):
            for _ in range(n):
                if pend: pend.pop(0)()
        for x in rl[:3]: A(x)
        mfma(buf, 1, first)
        for x in rl[3:]: A(x)
        mfma(buf, 2, first)
        gap(GAP)
        mfma(buf, 3, first)
        gap(GAP)
        A(f"v_mfma_f32_16x16x32_bf16 {v(cacc,4)}, {v(fA[buf][0],4)}, {v(sel,4)}, {'0' if first else v(cacc,4)}")
        if step & 1 == 0: gap(99)
    stamp(A, 2)
    CV = 4 * PW
    A(f"s_lshl_b32 {s(s_t0)}, {s(s_wf)}, 1")
    A(f"s_add_u32 {s(s_t0)}, {s(s_t0)}, {s(s_wt)}")
    A(f"s_lshl_b32 {s(s_t0)}, {s(s_t0)}, 7")
    A(f"s_add_u32 {s(s_t0)}, {s(s_t0)}, {CV}")
    A(f"v_and_b32 {v(t1)}, 15, {v(lane)}")
    A(f"v_lshrrev_b32 {v(t2)}, 4, {v(lane)}")
    A(f"v_lshlrev_b32 {v(t2)}, 4, {v(t2)}")
    A(f"v_lshl_add_u32 {v(t2)}, {v(t1)}, 6, {v(t2)}")
    A(f"v_add_u32 {v(t2)}, {s(s_t0)}, {v(t2)}")
    A(f"v_cmp_gt_u32 vcc, 2, {v(t1)}")
    A(f"v_mov_b32 {v(t3)}, {CV + 512}")
    A(f"v_lshl_add_u32 {v(t3)}, {v(lane)}, 4, {v(t3)}")
    A(f"v_cndmask_b32 {v(t2)}, {v(t3)}, {v(t2)}, vcc")
    A(f"ds_write_b128 {v(t2)}, {v(cacc,4)}")
    for k in range(NSW): dmaW2(k)
    A("s_waitcnt lgkmcnt(0)")
    A("s_barrier")
    A(f"v_and_b32 {v(t1)}, 31, {v(lane)}")
    A(f"v_lshlrev_b32 {v(t1)}, 2, {v(t1)}")
    for u in range(2):
        A(f"s_xor_b32 {s(s_t0)}, {s(s_wt)}, {u}")
        A(f"s_lshl_b32 {s(s_t1)}, {s(s_wf)}, 1")
        A(f"s_add_u32 {s(s_t0)}, {s(s_t0)}, {s(s_t1)}")
        A(f"s_lshl_b32 {s(s_t0)}, {s(s_t0)}, 7")
        A(f"s_add_u32 {s(s_t0)}, {s(s_t0)}, {CV}")
        A(f"v_add_u32 {v(t2)}, {s(s_t0)}, {v(t1)}")
        A(f"ds_read_b32 {v(cacc+u)}, {v(t2)}")
    A(f"v_cmp_gt_u32 vcc, 32, {v(lane)}")
    A("s_waitcnt lgkmcnt(0)")
    for u in range(2):
        A(f"v_cvt_pk_bf16_f32 {v(t1)}, {v(cacc+u)}, {v(cacc+u)}")
        A(f"v_and_b32 {v(t1)}, 0xffff0000, {v(t1)}")
        A(f"v_sub_f32 {v(t1)}, {v(cacc+u)}, {v(t1)}")
        A(f"v_cvt_pk_bf16_f32 {v(t1)}, {v(cacc+u)}, {v(t1)}")
        A(f"v_cndmask_b32 {v(augA[u])}, 0, {v(t1)}, vcc")
        A(f"v_cndmask_b32 {v(augA[u]+1)}, 0, {v(vb1[u])}, vcc")
        A(f"v_mov_b32 {v(augA[u]+2)}, 0"); A(f"v_mov_b32 {v(augA[u]+3)}, 0")
    if flags:
        lok = newlabel("st_ok")
        A(f"s_cmp_eq_u32 {s(s_ok)}, 1")
        A(f"s_cbranch_scc1 {lok}")
        poll_spin(A, vPv, vPa, sDB, 1)
        aug_loads(None)
        A("s_waitcnt vmcnt(0)")
        A.label(lok)
    Q.wait("st")
    for k, (uf, ut) in enumerate(order):
        A(f"v_mfma_f32_32x32x16_bf16 {v(acc[uf][ut],16)}, {v(augA[uf],4)}, {v(augB[ut],4)}, {v(acc[uf][ut],16)}")
    if 'fine' not in OPT: stamp(A, 3)
    T = ep; Hh = ep + 8; O = [ep + 16, ep + 20]; K0 = ep + 24; K1 = ep + 26
    k0 = -2.0 * math.sqrt(2.0 / math.pi) * math.log2(math.e)
    for i in range(2):
        A(f"v_mov_b32 {v(K0+i)}, {f32bits(k0)}")
        A(f"v_mov_b32 {v(K1+i)}, {f32bits(k0 * 0.044715)}")
        A(f"v_mov_b32 {v(P[i])}, {v(P[i]+1)}")
    ob = 0
    for uf in range(2):
        A(f"s_xor_b32 {s(s_t0)}, {s(s_wt)}, {uf}")
        A(f"s_lshl_b32 {s(s_t1)}, {s(s_wf)}, 1")
        A(f"s_add_u32 {s(s_t2)}, {s(s_t0)}, {s(s_t1)}")
        for ut in range(2):
            A(f"s_xor_b32 {s(s_t0)}, {s(s_wf)}, {ut}")
            A(f"s_lshl_b32 {s(s_t1)}, {s(s_wt)}, 1")
            A(f"s_add_u32 {s(s_t0)}, {s(s_t0)}, {s(s_t1)}")
            A(f"s_lshl_b32 {s(s_t1)}, {s(s_rb)}, 2")
            A(f"s_add_u32 {s(s_t0)}, {s(s_t0)}, {s(s_t1)}")
            A(f"s_mul_i32 {s(s_t0)}, {s(s_t0)}, 112")
            A(f"s_lshl_b32 {s(s_t1)}, {s(s_fb)}, 3")
            A(f"s_add_u32 {s(s_t0)}, {s(s_t0)}, {s(s_t1)}")
            A(f"s_lshl_b32 {s(s_t1)}, {s(s_t2)}, 1")
            A(f"s_add_u32 {s(s_t0)}, {s(s_t0)}, {s(s_t1)}")
            A(f"s_lshl_b32 {s(s_ho)}, {s(s_t0)}, 10")
            for kk in range(2):
                ac = acc[uf][ut] + 8*kk
                pr = range(4)
                for p in pr: A(f"v_pk_mul_f32 {v(Hh+2*p,2)}, {v(ac+2*p,2)}, {v(P[ut],2)}")
                for p in pr: A(f"v_pk_mul_f32 {v(T+2*p,2)}, {v(Hh+2*p,2)}, {v(Hh+2*p,2)}")
                for p in pr: A(f"v_pk_fma_f32 {v(T+2*p,2)}, {v(T+2*p,2)}, {v(K1,2)}, {v(K0,2)}")
                for p in pr: A(f"v_pk_mul_f32 {v(T+2*p,2)}, {v(Hh+2*p,2)}, {v(T+2*p,2)}")
                for e in range(8): A(f"v_exp_f32 {v(T+e)}, {v(T+e)}")
                for p in pr: A(f"v_pk_add_f32 {v(T+2*p,2)}, {v(T+2*p,2)}, 1.0 op_sel_hi:[1,0]")
                for e in range(8): A(f"v_rcp_f32 {v(T+e)}, {v(T+e)}")
                for p in pr: A(f"v_pk_mul_f32 {v(T+2*p,2)}, {v(Hh+2*p,2)}, {v(T+2*p,2)}")
                for p in pr: A(f"v_cvt_pk_bf16_f32 {v(O[ob]+p)}, {v(T+2*p)}, {v(T+2*p+1)}")
                A(f"buffer_store_dwordx4 {v(O[ob],4)}, {v(vH)}, {s(sWS,4)}, {s(s_ho)} offen offset:{1024*kk} sc1")
                Q.issue("hst")
                ob ^= 1
    if 'fine' not in OPT: stamp(A, 4)
    hiA = R.hi
    R.release(mk)
    acc = [[R.alloc(16, 4) for _ in range(2)] for _ in range(2)]
    fA = [[R.alloc(4, 4) for _ in range(2)] for _ in range(2)]
    hb = [[R.alloc(4, 4) for _ in range(2)] for _ in range(DH)]
    xr = R.alloc(8, 4); st = R.alloc(4, 2); dk = R.alloc(4, 4); bb = R.alloc(4, 4); yr = R.alloc(8, 4)
    vT, vY, vF = R.alloc(), R.alloc(), R.alloc()
    Q.wait_all()
    A("s_barrier")
    A(f"s_lshl_b32 {s(s_t0)}, {s(s_rb)}, 7")
    A(f"s_add_u32 {s(s_t0)}, {s(s_t0)}, {FL_OFF}")
    A(f"v_mov_b32 {v(vF)}, {s(s_t0)}")
    if flags:
        l1 = newlabel("h_pub")
        A(f"s_cmp_lg_u32 {s(s_wv)}, 0")
        A(f"s_cbranch_scc1 {l1}")
        arrive(A, vF, vone, sWS)
        A.label(l1)
    A(f"v_lshrrev_b32 {v(t0)}, 3, v0")
    A(f"v_and_b32 {v(t1)}, 7, v0")
    A(f"v_mul_u32_u24 {v(vT)}, 896, {v(t0)}")
    A(f"v_lshl_add_u32 {v(vT)}, {v(t1)}, 4, {v(vT)}")
    A(f"v_lshlrev_b32 {v(vY)}, 15, {v(t1)}")
    A(f"v_bfe_u32 {v(t2)}, {v(t0)}, 2, 2")
    A(f"v_lshl_add_u32 {v(vY)}, {v(t2)}, 8, {v(vY)}")
    A(f"v_lshrrev_b32 {v(t2)}, 4, {v(t0)}")
    A(f"v_lshl_add_u32 {v(vY)}, {v(t2)}, 4, {v(vY)}")
    A(f"v_and_b32 {v(t2)}, 3, {v(t0)}")
    A(f"v_lshl_add_u32 {v(vY)}, {v(t2)}, 2, {v(vY)}")
    A(f"buffer_load_dwordx4 {v(xr,4)}, {v(vT)}, {s(sX,4)}, {s(s_ob0)} offen")
    A(f"buffer_load_dwordx4 {v(xr+4,4)}, {v(vT)}, {s(sX,4)}, {s(s_ob1)} offen")
    A(f"v_lshlrev_b32 {v(t2)}, 4, {v(t1)}")
    A(f"s_lshl_b32 {s(s_t0)}, {s(s_cb)}, 7")
    A(f"buffer_load_dwordx4 {v(dk,4)}, {v(t2)}, {s(sD,4)}, {s(s_t0)} offen")
    A(f"buffer_load_dwordx4 {v(bb,4)}, {v(t2)}, {s(sB,4)}, {s(s_t0)} offen")
    A(f"v_lshlrev_b32 {v(t0)}, 3, {v(t0)}")
    A(f"s_lshl_b32 {s(s_t0)}, {s(s_r64)}, 9")
    A(f"s_add_u32 {s(s_t0)}, {s(s_t0)}, {ST_OFF}")
    A(f"buffer_load_dwordx2 {v(st,2)}, {v(t0)}, {s(sWS,4)}, {s(s_t0)} offen sc1")
    A(f"buffer_load_dwordx2 {v(st+2,2)}, {v(t0)}, {s(sWS,4)}, {s(s_t0)} offen offset:256 sc1")
    if flags:
        l1 = newlabel("h_wait")
        A(f"s_cmp_lg_u32 {s(s_wv)}, 0")
        A(f"s_cbranch_scc1 {l1}")
        poll_spin(A, vPv, vF, sWS, 14, sleep=2)
        A.label(l1)
        A("s_barrier")
    A("s_waitcnt vmcnt(0)")
    Q.q = []
    if 'fine' not in OPT: stamp(A, 5)
    def ldH(k):
        for tt in range(2):
            A(f"s_add_u32 {s(s_t0)}, {s(s_hb)}, {k*1024 + tt*112*1024}")
            A(f"buffer_load_dwordx4 {v(hb[k % DH][tt],4)}, {v(vH)}, {s(sWS,4)}, {s(s_t0)} offen sc1")
            Q.issue(("H", k))
    for k in range(DH): ldH(k)
    def rdA(k, buf):
        L = []
        for dt in range(2):
            for h in range(2):
                L.append(f"ds_read_b64_tr_b16 {v(fA[buf][dt]+2*h,2)}, {v(vA2[dt])} offset:{(k % NSW)*2048 + h*1024}")
        return L
    def y_loads(tag):
        A(f"s_lshl_b32 {s(s_t0)}, {s(s_cb)}, 18")
        A(f"s_lshr_b32 {s(s_t1)}, {s(s_r64)}, 2")
        A(f"s_lshl_b32 {s(s_t1)}, {s(s_t1)}, 10")
        A(f"s_add_u32 {s(s_t0)}, {s(s_t0)}, {s(s_t1)}")
        A(f"s_and_b32 {s(s_t1)}, {s(s_r64)}, 3")
        A(f"s_lshl_b32 {s(s_t1)}, {s(s_t1)}, 6")
        A(f"s_add_u32 {s(s_t0)}, {s(s_t0)}, {s(s_t1)}")
        A(f"s_add_u32 {s(s_t0)}, {s(s_t0)}, {Y_OFF}")
        for it in range(2):
            for i in range(4):
                A(f"s_add_u32 {s(s_t1)}, {s(s_t0)}, {i*8192 + it*32}")
                A(f"buffer_load_dword {v(yr+4*it+i)}, {v(vY)}, {s(sWS,4)}, {s(s_t1)} offen sc1")
                if tag: Q.issue(tag)
    if flags:
        A(f"s_lshl_b32 {s(s_t0)}, {s(s_cb)}, 2")
        A(f"s_add_u32 {s(s_t0)}, {s(s_t0)}, {DONE_Y}")
        A(f"v_mov_b32 {v(vPa)}, {s(s_t0)}")
    for x in rdA(0, 0): A(x)
    for k in range(28):
        buf = k & 1
        if k + 1 < 28: Q.wait(("W2", k + 1))
        Q.wait(("H", k))
        A("s_waitcnt lgkmcnt(0)")
        rl = rdA(k + 1, buf ^ 1) if k + 1 < 28 else []
        n = 0
        for dt in range(2):
            for tt in range(2):
                cin = "0" if k == 0 else v(acc[dt][tt], 16)
                A(f"v_mfma_f32_32x32x16_bf16 {v(acc[dt][tt],16)}, {v(fA[buf][dt],4)}, {v(hb[k % DH][tt],4)}, {cin}")
                if n < 2:
                    for x in rl[2*n:2*n+2]: A(x)
                if n == 1 and k + NSW < 28: dmaW2(k + NSW)
                if n == 3 and k + DH < 28: ldH(k + DH)
                n += 1
        if flags and k == YP:
            poll_issue(A, vPv, vPa, sDB); Q.issue("py")
        if k == YL:
            if flags:
                Q.wait("py")
                poll_test(A, vPv, 1)
                A(f"s_cselect_b32 {s(s_ok)}, 1, 0")
            y_loads("y")
    if 'fine' not in OPT: stamp(A, 6)
    A(f"v_and_b32 {v(t0)}, 31, {v(lane)}")
    A(f"v_mul_u32_u24 {v(t0)}, 272, {v(t0)}")
    A(f"v_lshrrev_b32 {v(t1)}, 5, {v(lane)}")
    A(f"v_lshl_add_u32 {v(t0)}, {v(t1)}, 4, {v(t0)}")
    A(f"v_add_u32 {v(t0)}, {s(s_lb)}, {v(t0)}")
    for dt in range(2):
        for tt in range(2):
            for g in range(4):
                A(f"ds_write_b128 {v(t0)}, {v(acc[dt][tt]+4*g,4)} offset:{tt*32*272 + (32*dt + 8*g)*4}")
    if flags:
        lok = newlabel("y_ok")
        A(f"s_cmp_eq_u32 {s(s_ok)}, 1")
        A(f"s_cbranch_scc1 {lok}")
        poll_spin(A, vPv, vPa, sDB, 1)
        y_loads(None)
        A.label(lok)
    Q.wait_all()
    Df = acc[0][0]; Bf = acc[0][0] + 8
    A("s_waitcnt lgkmcnt(0)")
    for i in range(4):
        A(f"v_lshlrev_b32 {v(Df+2*i)}, 16, {v(dk+i)}")
        A(f"v_and_b32 {v(Df+2*i+1)}, 0xffff0000, {v(dk+i)}")
        A(f"v_lshlrev_b32 {v(Bf+2*i)}, 16, {v(bb+i)}")
        A(f"v_and_b32 {v(Bf+2*i+1)}, 0xffff0000, {v(bb+i)}")
    A("s_barrier")
    A(f"v_lshrrev_b32 {v(t0)}, 3, v0")
    A(f"v_mul_u32_u24 {v(t0)}, 272, {v(t0)}")
    A(f"v_and_b32 {v(t1)}, 7, v0")
    A(f"v_lshl_add_u32 {v(t0)}, {v(t1)}, 5, {v(t0)}")
    X8 = acc[1][1]; Y8 = acc[1][1] + 8
    for it in range(2):
        for w in range(4):
            dst = (acc[0][1] if w < 2 else acc[1][0]) + 8*(w & 1)
            A(f"ds_read_b128 {v(dst,4)}, {v(t0)} offset:{w*PW + it*32*272}")
            A(f"ds_read_b128 {v(dst+4,4)}, {v(t0)} offset:{w*PW + it*32*272 + 16}")
        for i in range(4):
            A(f"v_lshlrev_b32 {v(X8+2*i)}, 16, {v(xr+4*it+i)}")
            A(f"v_and_b32 {v(X8+2*i+1)}, 0xffff0000, {v(xr+4*it+i)}")
            A(f"v_lshlrev_b32 {v(Y8+2*i)}, 16, {v(yr+4*it+i)}")
            A(f"v_and_b32 {v(Y8+2*i+1)}, 0xffff0000, {v(yr+4*it+i)}")
        sp = st + 2*it
        for p in range(4): A(f"v_pk_add_f32 {v(Y8+2*p,2)}, {v(Y8+2*p,2)}, {v(X8+2*p,2)}")
        for p in range(4): A(f"v_pk_add_f32 {v(X8+2*p,2)}, {v(X8+2*p,2)}, {v(sp,2)} op_sel_hi:[1,0] neg_lo:[0,1] neg_hi:[0,1]")
        A(f"v_mov_b32 {v(sp)}, {v(sp+1)}")
        for p in range(4): A(f"v_pk_mul_f32 {v(X8+2*p,2)}, {v(X8+2*p,2)}, {v(sp,2)}")
        for p in range(4): A(f"v_pk_fma_f32 {v(Y8+2*p,2)}, {v(X8+2*p,2)}, {v(Df+2*p,2)}, {v(Y8+2*p,2)}")
        for p in range(4): A(f"v_pk_add_f32 {v(Y8+2*p,2)}, {v(Y8+2*p,2)}, {v(Bf+2*p,2)}")
        A("s_waitcnt lgkmcnt(0)")
        a0, a1 = acc[0][1], acc[1][0]
        for p in range(4): A(f"v_pk_add_f32 {v(a0+2*p,2)}, {v(a0+2*p,2)}, {v(a0+8+2*p,2)}")
        for p in range(4): A(f"v_pk_add_f32 {v(a1+2*p,2)}, {v(a1+2*p,2)}, {v(a1+8+2*p,2)}")
        for p in range(4): A(f"v_pk_add_f32 {v(a0+2*p,2)}, {v(a0+2*p,2)}, {v(a1+2*p,2)}")
        for p in range(4): A(f"v_pk_add_f32 {v(Y8+2*p,2)}, {v(Y8+2*p,2)}, {v(a0+2*p,2)}")
        o = hb[it][0]
        for p in range(4): A(f"v_cvt_pk_bf16_f32 {v(o+p)}, {v(Y8+2*p)}, {v(Y8+2*p+1)}")
        A(f"buffer_store_dwordx4 {v(o,4)}, {v(vT)}, {s(sO,4)}, {s(s_ob0 if it == 0 else s_ob1)} offen")
    stamp(A, 7)
    dump_stamps(A, 8, 2, sWS, t0, t1)
    A("s_endpgm")
    return max(hiA, R.hi)
```

```python
from common import *
from g1 import VmQ
import math, os
OPT = os.environ.get('SOPT', '')

UEXP = list(range(8)) + [256 + 2*i for i in range(4)] + [512, 516, 768, 772] + [1024, 1280, 1536, 1792, 2048]
def bf16_round_int(l):
    import struct
    u = struct.unpack("<I", struct.pack("<f", float(l)))[0]
    u = (u + 0x7FFF + ((u >> 16) & 1)) & 0xFFFF0000
    return int(struct.unpack("<f", struct.pack("<I", u))[0])
def rowcol(lv):
    if lv == 2048: return 20, 0
    col = (lv & 255) >> 3
    if lv < 256: row = lv & 7
    elif lv < 512: row = 8 + ((lv & 7) >> 1)
    elif lv < 1024: row = 12 + 2 * ((lv >> 8) & 1) + ((lv & 7) >> 2)
    else: row = 16 + ((lv >> 8) & 3)
    assert UEXP[row] + 8 * col == lv
    return row, col
ZERO_SLOT = 6144
def lag_table():
    P = [ZERO_SLOT] * 4
    for lag in range(2048):
        r, c = rowcol(bf16_round_int(lag))
        P.append((r * 32 + c) * 8)
    P += [ZERO_SLOT] * 12
    return P
def table_text():
    P = lag_table()
    o = ".p2align 8\n.type lag_table,@object\nlag_table:\n"
    for i in range(0, len(P), 16):
        o += ".short " + ",".join(str(x) for x in P[i:i+16]) + "\n"
    o += ".size lag_table, .-lag_table\n"
    return o

T0 = 0; TP = 6160
STG = 16384
KC = 12800; KCP = 4160; KCH = 4 * KCP
XB = KC + 2 * KCH; XP = 4608

def emit_s(A, sid, flags=True, dumpK=False, pf_w2=True):
    sP = [8, 12, 16, 20, 24, 28]
    sWS = 32
    s_wv, s_ch, s_mh, s_t0, s_t1, s_ldt = 36, 37, 38, 39, 40, 41
    s_tb = 42
    Q = VmQ(A)
    stamp(A, 0)
    names = ["Are", "Aim", "Bre", "Bim", "Cre", "Cim"]
    for k, nm in enumerate(names):
        A(f"s_load_dwordx2 {s(sP[k],2)}, s[0:1], {KA[nm]}")
    A(f"s_load_dwordx2 {s(sWS,2)}, s[0:1], {KA['ws']}")
    A(f"s_load_dwordx2 s[44:45], s[0:1], {KA['ldt']}")
    sDB, sW2 = 46, 48
    A(f"s_load_dwordx2 {s(sDB,2)}, s[0:1], {KA['dbg']}")
    A(f"s_load_dwordx2 {s(sW2,2)}, s[0:1], {KA['w2']}")
    R = Regs(3)
    lane = R.alloc(); t0, t1, t2, t3, t4, t5 = [R.alloc() for _ in range(6)]
    prm = R.alloc(6); idx = R.alloc(6, 2); dt = R.alloc()
    xr = R.alloc(8, 4)
    vPa, vPv, vone, vpf = R.alloc(), R.alloc(), R.alloc(), R.alloc(2, 2)
    A(f"v_lshrrev_b32 {v(t0)}, 6, v0")
    A(f"v_and_b32 {v(lane)}, 63, v0")
    A(f"v_readfirstlane_b32 {s(s_wv)}, {v(t0)}")
    A(f"s_getpc_b64 {s(s_tb,2)}")
    A.label(f"L_s_tb_{id(A)}")
    A(f"s_add_u32 {s(s_tb)}, {s(s_tb)}, lag_table-L_s_tb_{id(A)}")
    A(f"s_addc_u32 {s(s_tb+1)}, {s(s_tb+1)}, 0")
    A(f"v_lshlrev_b32 {v(t1)}, 4, v0")
    A(f"global_load_dwordx4 {v(idx,4)}, {v(t1)}, {s(s_tb,2)}")
    A(f"global_load_dwordx2 {v(idx+4,2)}, {v(t1)}, {s(s_tb,2)} offset:16")
    Q.issue("idx", 2)
    A(f"s_lshr_b32 {s(s_ch)}, {s(s_wv)}, 1")
    A(f"s_and_b32 {s(s_mh)}, {s(s_wv)}, 1")
    A("s_waitcnt lgkmcnt(0)")
    for k in range(6): srd(A, sP[k], P_BYTES)
    srd(A, sWS, WS_USED)
    A(f"s_lshl_b32 {s(s_t0)}, {s(sid)}, 2")
    A(f"s_load_dword {s(s_ldt)}, s[44:45], {s(s_t0)}")
    A(f"s_lshl_b32 {s(s_t0)}, {s(sid)}, 1")
    A(f"s_add_u32 {s(s_t0)}, {s(s_t0)}, {s(s_ch)}")
    A(f"s_lshl_b32 {s(s_t0)}, {s(s_t0)}, 9")
    A(f"s_lshl_b32 {s(s_t1)}, {s(s_mh)}, 8")
    A(f"s_add_u32 {s(s_t0)}, {s(s_t0)}, {s(s_t1)}")
    A(f"v_lshlrev_b32 {v(t1)}, 2, {v(lane)}")
    for k in range(6):
        A(f"buffer_load_dword {v(prm+k)}, {v(t1)}, {s(sP[k],4)}, {s(s_t0)} offen")
        Q.issue("prm")
    srd(A, sW2, W_BYTES)
    A(f"v_mov_b32 {v(vPa)}, {DONE_XT}")
    A(f"v_mov_b32 {v(vone)}, 1")
    wadr = [R.alloc() for _ in range(8)]
    radr = [R.alloc(), R.alloc()]
    A(f"s_lshl_b32 {s(s_t0)}, {s(s_wv)}, 14")
    A(f"s_add_u32 {s(s_t0)}, {s(s_t0)}, {STG}")
    def swz(dst, n, tmp):
        A(f"v_bfe_u32 {v(dst)}, {v(n)}, 1, 1")
        A(f"v_lshlrev_b32 {v(dst)}, 2, {v(dst)}")
        A(f"v_and_b32 {v(tmp)}, 1, {v(n)}")
        A(f"v_or_b32 {v(dst)}, {v(dst)}, {v(tmp)}")
        A(f"v_bfe_u32 {v(tmp)}, {v(n)}, 2, 1")
        A(f"v_lshl_or_b32 {v(dst)}, {v(tmp)}, 1, {v(dst)}")
    swz(t2, lane, t3)
    A(f"v_lshlrev_b32 {v(t3)}, 7, {v(lane)}")
    A(f"v_lshl_add_u32 {v(t3)}, {v(t2)}, 4, {v(t3)}")
    A(f"v_add_u32 {v(wadr[0])}, {s(s_t0)}, {v(t3)}")
    for c in range(1, 8): A(f"v_xor_b32 {v(wadr[c])}, {c << 4}, {v(wadr[0])}")
    A(f"v_lshrrev_b32 {v(t1)}, 5, {v(lane)}")
    A(f"v_bfe_u32 {v(t2)}, {v(lane)}, 2, 2")
    A(f"v_lshl_add_u32 {v(t1)}, {v(t1)}, 2, {v(t2)}")
    swz(t2, t1, t3)
    A(f"v_bfe_u32 {v(t3)}, {v(lane)}, 4, 1")
    A(f"v_lshlrev_b32 {v(t3)}, 1, {v(t3)}")
    A(f"v_bfe_u32 {v(t4)}, {v(lane)}, 1, 1")
    A(f"v_add_u32 {v(t3)}, {v(t3)}, {v(t4)}")
    A(f"v_xor_b32 {v(t3)}, {v(t3)}, {v(t2)}")
    A(f"v_lshlrev_b32 {v(t4)}, 7, {v(t1)}")
    A(f"v_lshl_add_u32 {v(t4)}, {v(t3)}, 4, {v(t4)}")
    A(f"v_and_b32 {v(t5)}, 1, {v(lane)}")
    A(f"v_lshl_add_u32 {v(t4)}, {v(t5)}, 3, {v(t4)}")
    A(f"v_add_u32 {v(radr[0])}, {s(s_t0)}, {v(t4)}")
    A(f"v_xor_b32 {v(radr[1])}, 64, {v(radr[0])}")
    A("s_waitcnt lgkmcnt(0)")
    A(f"s_lshl_b32 {s(s_t0)}, {s(s_ldt)}, 16")
    A(f"s_and_b32 {s(s_t1)}, {s(s_ldt)}, 0xffff0000")
    A(f"s_cmp_eq_u32 {s(s_ch)}, 0")
    A(f"s_cselect_b32 {s(s_t0)}, {s(s_t0)}, {s(s_t1)}")
    L2E = math.log2(math.e)
    import struct
    hi = struct.unpack("<f", struct.pack("<f", L2E))[0]; lo = L2E - hi
    A(f"v_mov_b32 {v(t0)}, {s(s_t0)}")
    A(f"v_mov_b32 {v(t1)}, {f32bits(hi)}")
    A(f"v_mul_f32 {v(t2)}, {v(t0)}, {v(t1)}")
    A(f"v_fma_f32 {v(t3)}, {v(t0)}, {v(t1)}, -{v(t2)}")
    A(f"v_fmac_f32 {v(t3)}, {f32bits(lo)}, {v(t0)}")
    A(f"v_exp_f32 {v(t2)}, {v(t2)}")
    A(f"v_mul_f32 {v(t4)}, {f32bits(math.log(2.0))}, {v(t2)}")
    A(f"v_fma_f32 {v(t2)}, {v(t4)}, {v(t3)}, {v(t2)}")
    A(f"v_cvt_pk_bf16_f32 {v(t2)}, {v(t2)}, {v(t2)}")
    A(f"v_and_b32 {v(dt)}, 0xffff0000, {v(t2)}")
    m0 = R.mark()
    D = R.alloc(16, 4)
    FR = R.alloc(64, 4)
    PV = FR; PU = FR + 32
    def pair(): return R.alloc(2, 2)
    Z1, Z2, Z4, Z8, Z16, Z32, Z256, W = [pair() for _ in range(8)]
    Cp, Bp = pair(), pair()
    Ua, Ub, U8, U9, U10, U11, U12, U13, U14 = [pair() for _ in range(9)]
    Va, Vb, Vc, Vd = [pair() for _ in range(4)]
    TT = [pair() for _ in range(8)]
    SW = {q: pair() for q in (Z1, Z2, Z4, Z8, Z16, Z32, Z256, Bp)}
    swapped = set()
    a2, br = R.alloc(), R.alloc()
    def cmuls(lst):
        assert len(lst) <= len(TT)
        if 'nopk' in OPT:
            for k, (d, P_, Q_) in enumerate(lst):
                A(f"v_mul_f32 {v(TT[k])}, {v(P_)}, {v(Q_)}")
                A(f"v_mul_f32 {v(TT[k]+1)}, {v(P_)}, {v(Q_+1)}")
            for k, (d, P_, Q_) in enumerate(lst):
                A(f"v_fma_f32 {v(d)}, -{v(P_+1)}, {v(Q_+1)}, {v(TT[k])}")
                A(f"v_fma_f32 {v(d+1)}, {v(P_+1)}, {v(Q_)}, {v(TT[k]+1)}")
            return
        for k, (d, P_, Q_) in enumerate(lst):
            if Q_ not in swapped:
                A(f"v_mov_b32 {v(SW[Q_])}, {v(Q_+1)}")
                A(f"v_mov_b32 {v(SW[Q_]+1)}, {v(Q_)}")
                swapped.add(Q_)
        for k, (d, P_, Q_) in enumerate(lst):
            A(f"v_pk_mul_f32 {v(TT[k],2)}, {v(P_,2)}, {v(Q_,2)} op_sel:[0,0] op_sel_hi:[0,1]")
        for k, (d, P_, Q_) in enumerate(lst):
            A(f"v_pk_fma_f32 {v(d,2)}, {v(P_,2)}, {v(SW[Q_],2)}, {v(TT[k],2)} op_sel:[1,0,0] op_sel_hi:[1,1,1] neg_lo:[1,0,0]")
    def packU(m, a_, b_):
        A(f"v_cvt_pk_bf16_f32 {v(PU+m)}, {v(a_)}, {v(b_)}")
        A(f"v_cvt_pk_bf16_f32 {v(PU+12+m)}, -{v(a_+1)}, -{v(b_+1)}")
    def packV(m, a_, b_):
        A(f"v_cvt_pk_bf16_f32 {v(PV+m)}, {v(a_)}, {v(b_)}")
        A(f"v_cvt_pk_bf16_f32 {v(PV+16+m)}, {v(a_+1)}, {v(b_+1)}")
    Q.wait("prm")
    def pf():
            A(f"s_lshr_b32 {s(s_t0)}, {s(sid)}, 3")
            A(f"s_lshl_b32 {s(s_t0)}, {s(s_t0)}, 2")
            A(f"s_add_u32 {s(s_t0)}, {s(s_t0)}, {s(s_wv)}")
            A(f"s_lshl_b32 {s(s_t0)}, {s(s_t0)}, 14")
            A(f"v_lshlrev_b32 {v(t1)}, 7, {v(lane)}")
            A(f"buffer_load_dword {v(vpf)}, {v(t1)}, {s(sW2,4)}, {s(s_t0)} offen")
            A(f"s_add_u32 {s(s_t0)}, {s(s_t0)}, 8192")
            A(f"buffer_load_dword {v(vpf+1)}, {v(t1)}, {s(sW2,4)}, {s(s_t0)} offen")
            Q.issue("pf", 2)
    PFPOS = os.environ.get('PFPOS', 'it1')
    if pf_w2 and PFPOS == 'start': pf()
    if 'prio' in OPT: A("s_setprio 2")
    stamp(A, 1)
    for it in range(2):
        swapped.clear()
        if pf_w2 and it == 1 and PFPOS == 'it1': pf()
        if it == 1 and flags:
            poll_issue(A, vPv, vPa, sDB); Q.issue("pxt")
        def unp(dst, k):
            if it == 0: A(f"v_lshlrev_b32 {v(dst)}, 16, {v(prm+k)}")
            else: A(f"v_and_b32 {v(dst)}, 0xffff0000, {v(prm+k)}")
        unp(t0, 0); unp(t1, 1); unp(Bp, 2); unp(Bp+1, 3); unp(Cp, 4); unp(Cp+1, 5)
        A(f"v_mul_f32 {v(t0)}, {v(dt)}, {v(t0)}")
        A(f"v_mul_f32 {v(t1)}, {v(dt)}, {v(t1)}")
        A(f"v_mul_f32 {v(a2)}, {f32bits(L2E)}, {v(t0)}")
        A(f"v_mul_f32 {v(br)}, {f32bits(1.0/(2*math.pi))}, {v(t1)}")
        A(f"v_mul_f32 {v(Bp)}, {v(dt)}, {v(Bp)}")
        A(f"v_mul_f32 {v(Bp+1)}, {v(dt)}, {v(Bp+1)}")
        zs = [(Z1, 0), (Z8, 3), (Z256, 8)]
        mg = [TT[0], TT[0]+1, TT[1]]; an = [TT[1]+1, TT[2], TT[2]+1]
        for k, (Z, e) in enumerate(zs):
            if e:
                A(f"v_ldexp_f32 {v(mg[k])}, {v(a2)}, {e}")
                A(f"v_ldexp_f32 {v(an[k])}, {v(br)}, {e}")
            else:
                A(f"v_mov_b32 {v(mg[k])}, {v(a2)}")
                A(f"v_mov_b32 {v(an[k])}, {v(br)}")
        for k in range(3): A(f"v_fract_f32 {v(an[k])}, {v(an[k])}")
        for k in range(3): A(f"v_exp_f32 {v(mg[k])}, {v(mg[k])}")
        for k, (Z, e) in enumerate(zs): A(f"v_cos_f32 {v(Z)}, {v(an[k])}")
        for k, (Z, e) in enumerate(zs): A(f"v_sin_f32 {v(Z+1)}, {v(an[k])}")
        for k, (Z, e) in enumerate(zs):
            A(f"v_mul_f32 {v(Z)}, {v(mg[k])}, {v(Z)}")
            A(f"v_mul_f32 {v(Z+1)}, {v(mg[k])}, {v(Z+1)}")
        cmuls([(W, Cp, Bp), (Z2, Z1, Z1), (Z16, Z8, Z8)])
        cmuls([(Ub, W, Z1), (U8, W, Z256), (Z4, Z2, Z2), (Z32, Z16, Z16), (Vd, Z8, Z16), (Ua, W, Z2)])
        packU(0, W, Ub)
        A(f"v_cvt_pk_bf16_f32 {v(PV)}, 1.0, {v(Z8)}")
        A(f"v_cvt_pk_bf16_f32 {v(PV+16)}, 0, {v(Z8+1)}")
        packV(1, Z16, Vd)
        cmuls([(Ub, Ub, Z2), (U9, U8, Z2), (U10, U8, Z4), (U12, U8, Z256), (Vb, Z8, Z32), (Vc, Z16, Z32), (Vd, Vd, Z32)])
        packU(1, Ua, Ub)
        packU(4, U8, U9)
        packV(2, Z32, Vb)
        packV(3, Vc, Vd)
        cmuls([(Ua, Ua, Z2), (Ub, Ub, Z2), (U11, U9, Z4), (U13, U12, Z4), (U14, U12, Z256), (Va, Z32, Z32), (Vb, Vb, Z32), (Vc, Vc, Z32)])
        packU(2, Ua, Ub)
        packU(5, U10, U11)
        packU(6, U12, U13)
        cmuls([(Vd, Vd, Z32), (Ua, Ua, Z2), (Ub, Ub, Z2), (U13, U14, Z4), (U12, U14, Z256)])
        packV(4, Va, Vb); packV(5, Vc, Vd)
        packU(3, Ua, Ub)
        packU(7, U14, U13)
        cmuls([(Va, Va, Z32), (Vb, Vb, Z32), (Vc, Vc, Z32), (Vd, Vd, Z32), (U13, U12, Z256)])
        packV(6, Va, Vb); packV(7, Vc, Vd)
        packU(8, U12, U13)
        cmuls([(Va, Va, Z32), (Vb, Vb, Z32), (Vc, Vc, Z32), (Vd, Vd, Z32), (U12, U13, Z256)])
        packV(8, Va, Vb); packV(9, Vc, Vd)
        cmuls([(Va, Va, Z32), (Vb, Vb, Z32), (Vc, Vc, Z32), (Vd, Vd, Z32), (U13, U12, Z256)])
        packV(10, Va, Vb); packV(11, Vc, Vd)
        packU(9, U12, U13)
        cmuls([(Va, Va, Z32), (Vb, Vb, Z32), (Vc, Vc, Z32), (Vd, Vd, Z32), (U12, U13, Z256)])
        packV(12, Va, Vb); packV(13, Vc, Vd)
        packU(10, U12, U12)
        cmuls([(Va, Va, Z32), (Vb, Vb, Z32), (Vc, Vc, Z32), (Vd, Vd, Z32)])
        packV(14, Va, Vb); packV(15, Vc, Vd)
        A(f"v_mov_b32 {v(PU+11)}, 0"); A(f"v_mov_b32 {v(PU+23)}, 0")
        for c in range(8):
            A(f"ds_write_b128 {v(wadr[c])}, {v(PV+4*c,4)}")
        for c in range(3):
            A(f"ds_write_b128 {v(wadr[c])}, {v(PU+4*c,4)} offset:8192")
            A(f"ds_write_b128 {v(wadr[4+c])}, {v(PU+12+4*c,4)} offset:8192")
        if 'w1' in OPT: A("s_waitcnt lgkmcnt(0)")
        for ks in range(8):
            for h in range(2):
                A(f"ds_read_b64_tr_b16 {v(FR+8*ks+2*h,2)}, {v(radr[h])} offset:{8192 + 1024*ks}")
            for h in range(2):
                A(f"ds_read_b64_tr_b16 {v(FR+8*ks+4+2*h,2)}, {v(radr[h])} offset:{1024*ks}")
        for ks in range(8):
            A(f"s_waitcnt lgkmcnt({min(15, 4*(7-ks))})")
            cin = "0" if (it == 0 and ks == 0) else v(D, 16)
            A(f"v_mfma_f32_32x32x16_bf16 {v(D,16)}, {v(FR+8*ks,4)}, {v(FR+8*ks+4,4)}, {cin}")
    if pf_w2 and PFPOS == 'end': pf()
    stamp(A, 2)
    A(f"s_mul_i32 {s(s_t0)}, {s(s_ch)}, {TP}")
    A(f"s_lshl_b32 {s(s_t1)}, {s(s_mh)}, 2")
    A(f"s_add_u32 {s(s_t0)}, {s(s_t0)}, {s(s_t1)}")
    A(f"v_lshrrev_b32 {v(t1)}, 5, {v(lane)}")
    A(f"v_lshlrev_b32 {v(t1)}, 10, {v(t1)}")
    A(f"v_and_b32 {v(t2)}, 31, {v(lane)}")
    A(f"v_lshl_add_u32 {v(t1)}, {v(t2)}, 3, {v(t1)}")
    A(f"v_add_u32 {v(t1)}, {s(s_t0)}, {v(t1)}")
    for g in range(3):
        for i in range(4):
            A(f"ds_write_b32 {v(t1)}, {v(D+4*g+i)} offset:{T0 + (8*g+i)*256}")
    A(f"v_mov_b32 {v(t2)}, 0")
    A(f"v_mov_b32 {v(t3)}, {s(s_t0)}")
    A(f"ds_write_b32 {v(t3)}, {v(t2)} offset:{T0 + ZERO_SLOT}")
    R.release(m0)
    if flags:
        lok = newlabel("xt_ok")
        Q.wait("pxt")
        poll_test(A, vPv, 1)
        A(f"s_cbranch_scc1 {lok}")
        poll_spin(A, vPv, vPa, sDB, 1)
        A.label(lok)
    A(f"v_lshrrev_b32 {v(t1)}, 3, v0")
    A(f"v_mul_u32_u24 {v(t1)}, 28672, {v(t1)}")
    A(f"v_bfe_u32 {v(t2)}, v0, 1, 2")
    A(f"v_lshl_add_u32 {v(t1)}, {v(t2)}, 8, {v(t1)}")
    A(f"v_and_b32 {v(t2)}, 1, v0")
    A(f"v_lshl_add_u32 {v(t1)}, {v(t2)}, 4, {v(t1)}")
    A(f"s_lshr_b32 {s(s_t0)}, {s(sid)}, 3")
    A(f"s_lshl_b32 {s(s_t0)}, {s(s_t0)}, 10")
    A(f"s_and_b32 {s(s_t1)}, {s(sid)}, 7")
    A(f"s_lshl_b32 {s(s_t1)}, {s(s_t1)}, 5")
    A(f"s_add_u32 {s(s_t0)}, {s(s_t0)}, {s(s_t1)}")
    A(f"s_add_u32 {s(s_t0)}, {s(s_t0)}, {XT_OFF}")
    A(f"buffer_load_dwordx4 {v(xr,4)}, {v(t1)}, {s(sWS,4)}, {s(s_t0)} offen sc1")
    A(f"s_add_u32 {s(s_t0)}, {s(s_t0)}, {32*28672}")
    A(f"buffer_load_dwordx4 {v(xr+4,4)}, {v(t1)}, {s(sWS,4)}, {s(s_t0)} offen sc1")
    Q.issue("xt", 2)
    ia = R.alloc(12)
    if 'w2' in OPT: A("s_waitcnt lgkmcnt(0)")
    Q.wait("idx")
    for k in range(6):
        A(f"v_and_b32 {v(ia+2*k)}, 0xffff, {v(idx+k)}")
        A(f"v_lshrrev_b32 {v(ia+2*k+1)}, 16, {v(idx+k)}")
    A("s_waitcnt lgkmcnt(0)")
    A("s_barrier")
    stamp(A, 3)
    G = R.alloc(24, 2); Dw = R.alloc(6, 2); Al = R.alloc(8, 4); vK = R.alloc()
    A(f"v_lshlrev_b32 {v(vK)}, 4, v0")
    A(f"v_add_u32 {v(vK)}, {KC + 32}, {v(vK)}")
    C0 = R.alloc(4, 4); C2 = R.alloc(4, 4)
    for ch in range(2):
        for k in range(12):
            A(f"ds_read_b64 {v(G+2*k,2)}, {v(ia+k)} offset:{T0 + ch*TP}")
        for k in range(12):
            if k % 4 == 0: A(f"s_waitcnt lgkmcnt({8 - k})")
            A(f"v_add_f32 {v(G+2*k)}, {v(G+2*k)}, {v(G+2*k+1)}")
        for m in range(6):
            A(f"v_cvt_pk_bf16_f32 {v(Dw+m)}, {v(G+4*m)}, {v(G+4*m+2)}")
        for m in range(5):
            A(f"v_alignbit_b32 {v(Al+m)}, {v(Dw+m+1)}, {v(Dw+m)}, 16")
        kb = ch * KCH
        for m in range(4): A(f"v_mov_b32 {v(C0+m)}, {v(Dw+2+m)}")
        A(f"ds_write_b128 {v(vK)}, {v(C0,4)} offset:{kb}")
        for m in range(4): A(f"v_mov_b32 {v(C2+m)}, {v(Dw+1+m)}")
        A(f"ds_write_b128 {v(vK)}, {v(C2,4)} offset:{kb + 2*KCP}")
        for m in range(4): A(f"v_mov_b32 {v(C0+m)}, {v(Al+1+m)}")
        A(f"ds_write_b128 {v(vK)}, {v(C0,4)} offset:{kb + KCP}")
        A(f"ds_write_b128 {v(vK)}, {v(Al,4)} offset:{kb + 3*KCP}")
        if dumpK:
            A(f"s_lshl_b32 {s(s_t0)}, {s(sid)}, 1")
            A(f"s_add_u32 {s(s_t0)}, {s(s_t0)}, {ch}")
            A(f"s_lshl_b32 {s(s_t0)}, {s(s_t0)}, 12")
            A(f"s_add_u32 {s(s_t0)}, {s(s_t0)}, {KT_OFF}")
            A(f"v_lshlrev_b32 {v(t1)}, 4, v0")
            A(f"buffer_store_dwordx4 {v(Dw+2,4)}, {v(t1)}, {s(sWS,4)}, {s(s_t0)} offen")
            Q.issue("dump")
    Zr = C2
    for m in range(4): A(f"v_mov_b32 {v(Zr+m)}, 0")
    A(f"v_and_b32 {v(t1)}, 15, {v(lane)}")
    A(f"v_lshrrev_b32 {v(t2)}, 1, {v(t1)}")
    A(f"v_mul_u32_u24 {v(t2)}, {KCP}, {v(t2)}")
    A(f"v_and_b32 {v(t1)}, 1, {v(t1)}")
    A(f"v_lshl_add_u32 {v(t2)}, {v(t1)}, 4, {v(t2)}")
    A(f"ds_write_b128 {v(t2)}, {v(Zr,4)} offset:{KC}")
    A(f"v_lshrrev_b32 {v(t1)}, 5, {v(lane)}")
    A(f"v_mul_u32_u24 {v(t1)}, {XP}, {v(t1)}")
    A(f"v_and_b32 {v(t2)}, 31, {v(lane)}")
    A(f"v_lshl_add_u32 {v(t1)}, {v(t2)}, 4, {v(t1)}")
    A(f"ds_write_b128 {v(t1)}, {v(Zr,4)} offset:{XB}")
    A(f"v_lshrrev_b32 {v(t1)}, 3, v0")
    A(f"v_lshlrev_b32 {v(t1)}, 6, {v(t1)}")
    A(f"v_and_b32 {v(t2)}, 1, v0")
    A(f"v_mul_u32_u24 {v(t2)}, {XP}, {v(t2)}")
    A(f"v_add_u32 {v(t1)}, {v(t1)}, {v(t2)}")
    A(f"v_bfe_u32 {v(t2)}, v0, 1, 2")
    A(f"v_lshl_add_u32 {v(t1)}, {v(t2)}, 4, {v(t1)}")
    Q.wait("xt")
    A(f"ds_write_b128 {v(t1)}, {v(xr,4)} offset:{XB + 512}")
    A(f"ds_write_b128 {v(t1)}, {v(xr+4,4)} offset:{XB + 512 + 2048}")
    R.release(m0)
    acc = R.alloc(32, 4)
    BF = [R.alloc(32, 4), R.alloc(32, 4)]
    AF = [R.alloc(4, 4) for _ in range(3)]
    vKa, vXa = R.alloc(), R.alloc()
    A(f"s_mul_i32 {s(s_t0)}, {s(s_ch)}, {KCH}")
    A(f"s_lshl_b32 {s(s_t1)}, {s(s_mh)}, 8")
    A(f"s_add_u32 {s(s_t0)}, {s(s_t0)}, {s(s_t1)}")
    A(f"s_add_u32 {s(s_t0)}, {s(s_t0)}, {KC + 56}")
    A(f"v_bfe_u32 {v(t1)}, {v(lane)}, 2, 2")
    A(f"v_mul_u32_u24 {v(t1)}, {KCP}, {v(t1)}")
    A(f"v_and_b32 {v(t2)}, 3, {v(lane)}")
    A(f"v_lshl_add_u32 {v(t1)}, {v(t2)}, 3, {v(t1)}")
    A(f"v_lshrrev_b32 {v(t2)}, 4, {v(lane)}")
    A(f"v_lshlrev_b32 {v(t3)}, 4, {v(t2)}")
    A(f"v_sub_u32 {v(t1)}, {v(t1)}, {v(t3)}")
    A(f"v_add_u32 {v(vKa)}, {s(s_t0)}, {v(t1)}")
    A(f"s_mul_i32 {s(s_t0)}, {s(s_ch)}, {XP}")
    A(f"s_lshl_b32 {s(s_t1)}, {s(s_mh)}, 8")
    A(f"s_sub_u32 {s(s_t0)}, {s(s_t0)}, {s(s_t1)}")
    A(f"s_add_u32 {s(s_t0)}, {s(s_t0)}, {XB + 288}")
    A(f"v_and_b32 {v(t1)}, 15, {v(lane)}")
    A(f"v_lshlrev_b32 {v(t1)}, 5, {v(t1)}")
    A(f"v_add_u32 {v(t1)}, {v(t1)}, {v(t3)}")
    A(f"v_add_u32 {v(vXa)}, {s(s_t0)}, {v(t1)}")
    A("s_waitcnt lgkmcnt(0)")
    A("s_barrier")
    stamp(A, 4)
    def rdB(a_, buf, w):
        return f"ds_read_b128 {v(BF[buf]+4*w,4)}, {v(vXa)} offset:{512*w + 64*(3-a_)}"
    def rdA(a_, vv, slot):
        return [f"ds_read_b64_tr_b16 {v(AF[slot]+2*h,2)}, {v(vKa)} offset:{64*a_ + 512*vv + 8*(1-h)}" for h in range(2)]
    for w in range(8): A(rdB(0, 0, w))
    seq = [(a_, vv) for a_ in range(4) for vv in range(8)]
    for k in range(2):
        for x in rdA(*seq[k], k % 3): A(x)
    lg = 8 + 4
    out = ["B0"] * 8 + ["A0"] * 2 + ["A1"] * 2
    def wait_for(tag):
        nonlocal out
        idxs = [i for i, t in enumerate(out) if t == tag]
        if not idxs: return
        n = len(out) - 1 - idxs[-1]
        A(f"s_waitcnt lgkmcnt({min(n, 15)})")
        if n <= 15: out = out[idxs[-1] + 1:]
    for k, (a_, vv) in enumerate(seq):
        wait_for(f"B{a_}"); wait_for(f"A{k}")
        buf = a_ & 1
        extra = []
        if k + 2 < len(seq):
            extra += [(x, f"A{k+2}") for x in rdA(*seq[k + 2], (k + 2) % 3)]
        if a_ < 3: extra.append((rdB(a_ + 1, buf ^ 1, vv), f"B{a_+1}"))
        for c in range(vv, 8):
            cin = "0" if (a_ == 0 and vv == 0) else v(acc+4*c, 4)
            A(f"v_mfma_f32_16x16x32_bf16 {v(acc+4*c,4)}, {v(AF[k % 3],4)}, {v(BF[buf]+4*(c-vv),4)}, {cin}")
            if extra:
                x, tag = extra.pop(0); A(x); out.append(tag)
        for x, tag in extra:
            A(x); out.append(tag)
    stamp(A, 5)
    A("s_barrier")
    vR = R.alloc()
    A(f"v_lshlrev_b32 {v(vR)}, 4, {v(lane)}")
    A(f"s_lshl_b32 {s(s_t0)}, {s(s_wv)}, 13")
    A(f"v_add_u32 {v(t1)}, {s(s_t0)}, {v(vR)}")
    for c in range(8):
        A(f"ds_write_b128 {v(t1)}, {v(acc+4*c,4)} offset:{1024*c}")
    A("s_waitcnt lgkmcnt(0)")
    A("s_barrier")
    A(f"s_lshl_b32 {s(s_t0)}, {s(s_wv)}, 11")
    A(f"v_add_u32 {v(t1)}, {s(s_t0)}, {v(vR)}")
    for cc in range(2):
        for w in range(4):
            A(f"ds_read_b128 {v(BF[cc]+4*w,4)}, {v(t1)} offset:{8192*w + 1024*cc}")
    A(f"v_lshlrev_b32 {v(t2)}, 4, {v(lane)}")
    A(f"s_lshl_b32 {s(s_t0)}, {s(sid)}, 13")
    A(f"s_lshl_b32 {s(s_t1)}, {s(s_wv)}, 11")
    A(f"s_add_u32 {s(s_t0)}, {s(s_t0)}, {s(s_t1)}")
    A(f"s_add_u32 {s(s_t0)}, {s(s_t0)}, {Y_OFF}")
    for cc in range(2):
        A(f"s_waitcnt lgkmcnt({4*(1-cc)})")
        b = BF[cc]
        for r_ in range(4):
            A(f"v_add_f32 {v(b+r_)}, {v(b+r_)}, {v(b+4+r_)}")
            A(f"v_add_f32 {v(b+8+r_)}, {v(b+8+r_)}, {v(b+12+r_)}")
        for r_ in range(4):
            A(f"v_cvt_pk_bf16_f32 {v(b+4+r_)}, {v(b+r_)}, {v(b+8+r_)}")
        A(f"buffer_store_dwordx4 {v(b+4,4)}, {v(t2)}, {s(sWS,4)}, {s(s_t0)} offen offset:{1024*cc} sc1")
    if flags:
        A("s_waitcnt vmcnt(0)")
        A("s_barrier")
        l2 = newlabel("y_pub")
        A(f"s_cmp_lg_u32 {s(s_wv)}, 0")
        A(f"s_cbranch_scc1 {l2}")
        A(f"s_lshr_b32 {s(s_t0)}, {s(sid)}, 5")
        A(f"s_lshl_b32 {s(s_t0)}, {s(s_t0)}, 7")
        A(f"s_add_u32 {s(s_t0)}, {s(s_t0)}, {FL_OFF + 2048}")
        A(f"v_mov_b32 {v(t1)}, {s(s_t0)}")
        arrive_ret(A, vPv, t1, vone, sWS)
        A(f"s_lshr_b32 {s(s_t0)}, {s(sid)}, 5")
        A(f"s_lshl_b32 {s(s_t0)}, {s(s_t0)}, 2")
        A(f"s_add_u32 {s(s_t0)}, {s(s_t0)}, {DONE_Y}")
        A(f"v_mov_b32 {v(t1)}, {s(s_t0)}")
        done_if_last(A, vPv, 32, t1, vone, sDB, s_t1)
        A.label(l2)
    stamp(A, 7)
    dump_stamps(A, 8, 2, sWS, t0, t1)
    A("s_endpgm")
    return R.hi
```

```python
import sys, os
import common
from common import *
import build
KN = NAME + "_kernel"
def build_single(diag=False, order="MASA"):
    import m, aux, sk
    A = Asm()
    PFN = {"m": 3, "s": 2, "a": 1}
    def prefetch(nm):
        A("s_getpc_b64 s[4:5]")
        A.label(f"L_{nm}_pc")
        A("v_lshlrev_b32 v1, 7, v0")
        A("v_cmp_gt_u32 vcc, 64, v0")
        A("s_and_saveexec_b64 s[6:7], vcc")
        A(f"s_cbranch_execz L_{nm}_pf")
        for k in range(PFN[nm]):
            A(f"v_min_u32 v1, L_{nm}_end-L_{nm}_pc-4, v1")
            A("global_load_dword v2, v1, s[4:5]")
            if k + 1 < PFN[nm]: A("v_add_u32 v1, 0x2000, v1")
        A.label(f"L_{nm}_pf")
        A("s_mov_b64 exec, s[6:7]")
    A("s_cmp_ge_u32 s2, 512")
    A("s_cbranch_scc1 L_exit")
    A("s_mov_b32 s3, s2")
    A("s_cmp_lt_u32 s2, 64")
    A("s_cbranch_scc1 L_a")
    A("s_sub_u32 s3, s2, 64")
    A("s_cmp_lt_u32 s2, 288")
    A("s_cbranch_scc1 L_m")
    A("s_sub_u32 s3, s2, 288")
    hi = 1
    A.label("L_s"); prefetch("s"); hi = max(hi, sk.emit_s(A, 3, dumpK=bool(os.environ.get("DUMPK")), pf_w2=os.environ.get("NOPF") is None)); A.label("L_s_end")
    A.label("L_a"); prefetch("a"); hi = max(hi, aux.emit_aux(A, 3)); A.label("L_a_end")
    A.label("L_m"); prefetch("m"); hi = max(hi, m.emit_m(A, 3)); A.label("L_m_end")
    A.label("L_exit")
    A("s_endpgm")
    n = A.pad_hazards()
    body = f".globl {KN}\n.p2align 8\n.type {KN},@function\n{KN}:\n" + A.text()
    vg = (hi + 7) // 8 * 8
    print(f"single: vgpr={hi} nops={n} lines={body.count(chr(10))}", file=sys.stderr)
    hdr = open("cdna_kernels/" + NAME + ".s.ref").read().split("; Override launch geometry")[0]
    out = hdr + "; One launch, 512 co-resident workgroups (2 per CU): 224 MLP tiles, 224 S4 channel pairs, 64 LayerNorm/helper.\n"
    out += "; @launch grid=(512,1,1) block=(256,1,1) lds=81920\n"
    out += '.amdgcn_target "amdgcn-amd-amdhsa--gfx950"\n.text\n' + body + sk.table_text() + '.section .rodata,"a"\n' + kernel_desc(KN, vg)
    return out
if __name__ == "__main__":
    if len(sys.argv) > 2 and sys.argv[2] == "diag": common.DIAG = True
    open(sys.argv[1], "w").write(build_single())
```
